```python
import torch

def _softmax(x, axis=-1):
    return torch.softmax(x, dim=axis)
def _gelu(x):
    return torch.nn.functional.gelu(x, approximate="tanh")
def _silu(x):
    return torch.nn.functional.silu(x)
def _sigmoid(x):
    return torch.sigmoid(x)
def _layernorm(x, axis=-1, eps=1e-5):
    m = x.mean(dim=axis, keepdim=True)
    v = x.var(dim=axis, keepdim=True, unbiased=False)
    return (x - m) / torch.sqrt(v + eps)
def _scatter_add(tgt, idx, src, axis=0):
    return tgt.clone().index_add_(axis, idx, src)
def _segment_sum(src, seg, n):
    out = torch.zeros((n,) + src.shape[1:], dtype=src.dtype)
    return out.index_add_(0, seg, src)
def _pad(x, pw):
    flat = tuple(v for pair in reversed(pw) for v in pair)
    return torch.nn.functional.pad(x, flat)

kernel_name = 'recurrent_scan__sliding_local_dilated__dense_activation_gelu__prompt'

def setup_inputs():

    _w = (lambda a: (lambda t: t.to(torch.bfloat16) if t.is_floating_point() else t)(torch.as_tensor(a)))
    def _A_setup():
        B, S, D = 1, 2048, 512
        return {
            "x": _w((lambda *s: torch.randn(*s, dtype=torch.bfloat16) * 0.05)(B, S, D)),
            "wqkv": _w((lambda *s: torch.randn(*s, dtype=torch.bfloat16) * 0.2)(D, 3 * D)),
            "wo": _w((lambda *s: torch.randn(*s, dtype=torch.bfloat16) * 0.2)(D, D)),
        }
    _A_in = _A_setup()

    def _B_setup():
        B, S, D, F = 1, 2048, 512, 1792
        return {
            "x": _w((lambda *s: torch.randn(*s, dtype=torch.bfloat16) * 0.05)(B, S, D)),
            "w1": _w((lambda *s: torch.randn(*s, dtype=torch.bfloat16) * 0.4)(D, F) * (D ** -0.5)),
            "b1": _w((lambda *s: torch.randn(*s, dtype=torch.bfloat16) * 0.4)(F) * 0.01),
            "w2": _w((lambda *s: torch.randn(*s, dtype=torch.bfloat16) * 0.1)(F, D) * (F ** -0.5)),
            "b2": _w((lambda *s: torch.randn(*s, dtype=torch.bfloat16) * 0.1)(D) * 0.01),
        }
    _B_in = _B_setup()

    return {
        "A_x": _A_in["x"],
        "A_wqkv": _A_in["wqkv"],
        "A_wo": _A_in["wo"],
        "B_x": _B_in["x"],
        "B_w1": _B_in["w1"],
        "B_b1": _B_in["b1"],
        "B_w2": _B_in["w2"],
        "B_b2": _B_in["b2"],
    }

def reference(A_x, A_wqkv, A_wo, B_x, B_w1, B_b1, B_w2, B_b2):
    def _A_ref(x, wqkv, wo):
        B, S, D = x.shape
        H = 32; Dh = D // H
        W, dil = 8, 2
        qkv = (lambda x, *d: x.permute(*d))((x @ wqkv).reshape(B, S, 3, H, Dh), 2, 0, 3, 1, 4)
        q, k, v = qkv[0], qkv[1], qkv[2]
        scale = Dh ** -0.5
        pos = torch.arange(S)
        off = torch.arange(W) * dil
        idx = pos[:, None] - off[None, :]
        mask = idx >= 0
        idx_c = torch.where(mask, idx, 0).reshape(-1)
        kg = k[:, :, idx_c, :].reshape(B, H, S, W, Dh)
        vg = v[:, :, idx_c, :].reshape(B, H, S, W, Dh)
        logits = torch.einsum("bhsd,bhswd->bhsw", q, kg) * scale
        logits = torch.where(mask[None, None, :, :], logits, -1e9)
        attn = _softmax(logits, axis=-1)
        o = torch.einsum("bhsw,bhswd->bhsd", attn, vg)
        return (lambda x, *d: x.permute(*d))(o, 0, 2, 1, 3).reshape(B, S, D) @ wo

    def _B_ref(x, w1, b1, w2, b2):
        h = torch.einsum("bsd,df->bsf", x, w1) + b1
        h = _gelu(h)
        return torch.einsum("bsf,fd->bsd", h, w2) + b2

    x = A_x
    xn = _layernorm(x, axis=-1)
    s = _A_ref(xn, A_wqkv, A_wo)
    g = _silu(_B_ref(xn, B_w1, B_b1, B_w2, B_b2))
    return x + s * g
```

```python
import re

REG = re.compile(r'(?<![\w.])([vas])(?:(\d+)|\[(\d+):(\d+)\])(?![\w])')
TRANS = ('v_exp_f32', 'v_log_f32', 'v_rcp_f32', 'v_rsq_f32', 'v_sqrt_f32', 'v_sin_f32', 'v_cos_f32')
NODST_S = ('s_cmp', 's_cbranch', 's_waitcnt', 's_barrier', 's_nop', 's_branch', 's_bitcmp', 's_setprio', 's_sleep', 's_endpgm')

def regs_of(op):
    out = []
    for m in REG.finditer(op):
        k = m.group(1)
        if m.group(2) is not None: out.append((k, int(m.group(2))))
        else: out += [(k, i) for i in range(int(m.group(3)), int(m.group(4)) + 1)]
    for name in ('vcc', 'exec', 'm0'):
        if re.search(r'(?<![\w])' + name + r'(?![\w])', op): out.append((name, 0))
    return out

class Ins:
    def __init__(self, text, tag=None, after=()):
        self.text = text.strip(); self.tag = tag; self.after = tuple(after)
        t = self.text.split(None, 1)
        self.mn = t[0]
        ops = [o.strip() for o in re.split(r',(?![^\[]*\])', t[1])] if len(t) > 1 else []
        self.ops = ops
        mn = self.mn
        self.mfma = mn.startswith('v_mfma')
        self.valu = mn.startswith('v_') and not self.mfma
        self.salu = mn.startswith('s_') and not mn.startswith(('s_load', 's_mem'))
        self.smem = mn.startswith(('s_load', 's_mem'))
        self.ds = mn.startswith('ds_')
        self.vm = mn.startswith(('buffer_', 'global_'))
        self.dma = self.vm and re.search(r'\blds\b', self.text) is not None
        self.trans = mn.replace('_e32', '').replace('_e64', '') in TRANS
        self.dpp = '_dpp' in mn
        self.perml = mn.startswith('v_permlane')
        R = [regs_of(o) for o in ops]
        flat = lambda l: [x for r in l for x in r]
        self.srcA = self.srcB = self.srcC = []
        if self.mfma:
            self.w = R[0]; self.srcA, self.srcB, self.srcC = R[1], R[2], R[3]; self.r = flat(R[1:])
            self.passes = 8 if '32x32' in mn else 4
        elif self.perml: self.w = flat(R); self.r = flat(R)
        elif self.valu:
            self.w = list(R[0]); self.r = flat(R[1:])
            if mn.startswith(('v_fmac', 'v_dot2c')) or self.dpp: self.r += R[0]
            if mn.startswith(('v_add_co', 'v_sub_co', 'v_addc_co')): self.w += R[1]; self.r = flat(R[2:])
        elif self.ds:
            if mn.startswith(('ds_read', 'ds_bpermute', 'ds_swizzle')): self.w = R[0]; self.r = flat(R[1:])
            else: self.w = []; self.r = flat(R)
        elif self.vm:
            if 'load' in mn and not self.dma: self.w = R[0]; self.r = flat(R[1:])
            else: self.w = []; self.r = flat(R)
            if self.dma: self.r = self.r + [('m0', 0)]
        elif mn.startswith(NODST_S): self.w = []; self.r = flat(R)
        else:
            self.w = list(R[0]) if R else []; self.r = flat(R[1:])
            if 'saveexec' in mn: self.w.append(('exec', 0))
        self.wide_store = self.vm and 'store' in mn and ('x4' in mn or 'x3' in mn)
        self.states = int(ops[0], 0) + 1 if mn == 's_nop' else 1
    def cost(self):
        if self.mfma: return 8
        if self.trans or self.perml: return 8
        return 4 * self.states

def need_states(p, c):
    n = 0
    pw, cr, cw = set(p.w), set(c.r), set(c.w)
    vec = lambda s: {x for x in s if x[0] in 'va' and len(x[0]) == 1}
    sca = lambda s: {x for x in s if x[0] in ('s', 'vcc')}
    if p.valu:
        if c.mfma and vec(pw) & cr: n = max(n, 2)
        if (c.perml or c.dpp) and vec(pw) & cr: n = max(n, 2)
        if c.mn.startswith(('v_readfirstlane', 'v_readlane')) and vec(pw) & cr: n = max(n, 1)
        if p.trans and c.valu and vec(pw) & cr: n = max(n, 1)
        if c.valu and sca(pw) & cr: n = max(n, 2)
        if c.vm and sca(pw) & cr: n = max(n, 5)
        if c.salu and sca(pw) & cr: n = max(n, 2)
    if p.mfma:
        big = 12 if p.passes == 8 else 8
        if c.mfma:
            if pw & (set(c.srcA) | set(c.srcB)): n = max(n, big)
            if pw & set(c.srcC):
                if not (p.w == c.srcC and p.passes == c.passes): n = max(n, big - 2)
            elif pw & cw and p.passes != c.passes: n = max(n, big)
        elif (c.valu or c.vm or c.ds) and pw & (cr | cw): n = max(n, big)
        if c.valu and set(p.srcC) & cw: n = max(n, 7 if p.passes == 8 else 3)
    if p.salu and ('m0', 0) in pw and c.dma: n = max(n, 1)
    if p.wide_store and (c.valu or c.mfma) and vec(set(p.r)) & cw: n = max(n, 2)
    return n

class Asm:
    def __init__(self): self.items = []
    def __call__(self, text, tag=None, after=()):
        for line in text.strip().split('\n'):
            line = line.split(';')[0].strip()
            if not line: continue
            if line.endswith(':') or line.startswith('.'): self.items.append(line)
            else: self.items.append(Ins(line, tag, after))
        return self
    def label(self, name): self.items.append(name + ':')
    def comment(self, text): self.items.append('; ' + text)
    def extend(self, other): self.items.extend(other.items if isinstance(other, Asm) else other)
    def wait(self, *tags): self.items.append(('wait', tags))
    def assume(self, vm=None, lgkm=None): self.items.append(('assume', vm, lgkm))

    def finalize(self):
        out = []
        vmq, lgq = [], []
        def emit_wait(nv, nl):
            parts = []
            if nv is not None: nv = min(nv, 63); parts.append(f'vmcnt({nv})'); del vmq[:max(0, len(vmq) - nv)]
            if nl is not None: nl = min(nl, 15); parts.append(f'lgkmcnt({nl})'); del lgq[:max(0, len(lgq) - nl)]
            if parts: out.append(Ins('s_waitcnt ' + ' '.join(parts)))
        def need(q, pred):
            for i in range(len(q) - 1, -1, -1):
                if pred(q[i]): return len(q) - 1 - i
            return None
        def lg_need(pred):
            n = need(lgq, pred)
            if n is not None and any(e[2] for e in lgq): n = 0
            return n
        for it in self.items:
            if isinstance(it, str): out.append(it); continue
            if isinstance(it, tuple):
                if it[0] == 'wait':
                    tags = set(it[1])
                    emit_wait(need(vmq, lambda e: e[0] in tags), lg_need(lambda e: e[0] in tags))
                else:
                    if it[1] is not None: vmq[:] = [(t, set(), False) for t in it[1]]
                    if it[2] is not None: lgq[:] = [(t, set(), False) for t in it[2]]
                continue
            touched = set(it.r) | set(it.w); tags = set(it.after)
            pred = lambda e: bool(e[1] & touched) or e[0] in tags
            emit_wait(need(vmq, pred), lg_need(pred))
            if it.mn == 's_waitcnt':
                m = re.search(r'vmcnt\((\d+)\)', it.text)
                if m: del vmq[:max(0, len(vmq) - int(m.group(1)))]
                m = re.search(r'lgkmcnt\((\d+)\)', it.text)
                if m: del lgq[:max(0, len(lgq) - int(m.group(1)))]
            out.append(it)
            if it.vm:
                vmq.append((it.tag, set(it.w), False))
                assert len(vmq) <= 63, 'vmcnt overflow at ' + it.text
            if it.ds: lgq.append((it.tag, set(it.w), False))
            if it.smem: lgq.append((it.tag, set(it.w), True))
        res = []
        for it in out:
            if isinstance(it, Ins):
                pad = pad_needed(res, it)
                if pad: res.append(Ins(f's_nop {pad - 1}'))
            res.append(it)
        self.final = res
        self.check_branches()
        return '\n'.join(('    ' + i.text) if isinstance(i, Ins) else i for i in res) + '\n'

    def check_branches(self):
        f = self.final
        labels = {x[:-1]: i for i, x in enumerate(f) if isinstance(x, str) and x.endswith(':')}
        for i, it in enumerate(f):
            if isinstance(it, Ins) and it.mn.startswith(('s_cbranch', 's_branch')):
                seq = [x for x in f[max(0, i - 40):i + 1]]
                cnt = 0
                for x in f[labels[it.ops[0]]:]:
                    if not isinstance(x, Ins): continue
                    p = pad_needed(seq, x)
                    assert p == 0, f'hazard across branch {it.text}: {x.text} needs {p}'
                    seq.append(x); cnt += x.states
                    if cnt > 20 or x.mn in ('s_branch', 's_endpgm'): break

def pad_needed(prev, c):
    dist = 0; pad = 0
    for p in reversed(prev):
        if not isinstance(p, Ins): continue
        n = need_states(p, c)
        if n > dist: pad = max(pad, n - dist)
        dist += p.states
        if dist >= 20: break
    return pad

def weave(main, fill, start=0, end=None):
    end = len(main) if end is None else end
    out = []; n = end - start; k = 0
    for i, g in enumerate(main):
        out.extend(g)
        if start <= i < end:
            want = ((i - start + 1) * len(fill) + n - 1) // n
            while k < want: out.extend(fill[k]); k += 1
    while k < len(fill): out.extend(fill[k]); k += 1
    return out

def G(text, tag=None, after=()):
    a = Asm(); a(text, tag, after); return a.items
```

```python
import sys, struct
from asmlib import *

NAME = "recurrent_scan__sliding_local_dilated__dense_activation_gelu__prompt_kernel"
SL, WR, XT = 45056, 11264, 135168
WS_FLAGS, WS_STAMPS, WS_SIZE = 0xA00000, 0xB00000, 0xC00000
def fb(x): return "0x%08x" % struct.unpack("<I", struct.pack("<f", x))[0]
LOG2E = 1.4426950408889634
GC0 = -2 * LOG2E * 0.7978845608028654
GC1 = GC0 * 0.044715
NEG = fb(-1e30)

pX, pQKV, pWO, pW1, pB1, pW2, pB2, pOUT, pDBG, pWS = 4, 6, 8, 12, 14, 16, 18, 20, 22, 24
rA, rB, rWS, rB1, rDBG, rWO, rX2, rOUT, rB2 = 28, 32, 36, 40, 44, 64, 68, 72, 76
sOFF, sINCA, sINCB, sM0, sST, sRS = 48, 59, 60, 61, 62, 63
sEX = 80
sW, sRB, sCG, sMT, sNT = 82, 83, 84, 85, 86
sT0, sT1, sT2, sT3 = 87, 88, 89, 3
sQ = 90
sWB, sW2B, sWOB, sSTO, sFLG = 96, 97, 98, 99, 100
sSTO6 = 101
sCLK = 26
vLANE, vL16, vW2D, vWOD, vTR = 255, 254, 253, 252, 248
vD = 243
vGO, vSTAMP, vONE = 242, 241, 240
def srd(r): return f"s[{r}:{r+3}]"
def vr(b, n): return f"v[{b}:{b+n-1}]"
def ar(b, n): return f"a[{b}:{b+n-1}]"

class Gen:
    def __init__(self, stamps=False, p1map=0, opts=None):
        self.a = Asm(); self.stamps = stamps; self.p1map = p1map; self.o = opts or {}

    def stamp(self, a, k):
        if self.stamps:
            a(f"s_memrealtime s[{sCLK}:{sCLK+1}]\ns_waitcnt lgkmcnt(0)\nv_writelane_b32 v{vSTAMP}, s{sCLK}, {k}")

    def mk_srd(self, a, r, p, size):
        a(f"s_mov_b32 s{r}, s{p}\ns_mov_b32 s{r+1}, s{p+1}\ns_mov_b32 s{r+2}, {size}\ns_mov_b32 s{r+3}, 0x20000")

    def prologue(self):
        a = self.a
        a(f"""
        s_cmp_ge_u32 s2, 256
        s_cbranch_scc1 L_end
        s_load_dwordx16 s[4:19], s[0:1], 0
        s_load_dwordx4 s[20:23], s[0:1], 64
        s_load_dwordx2 s[24:25], s[0:1], 80
        v_lshrrev_b32 v1, 6, v0
        v_and_b32 v{vLANE}, 63, v0
        v_readfirstlane_b32 s{sW}, v1
        v_mov_b32 v{vGO}, v0
        """)
        if self.stamps: a(f"v_mov_b32 v{vSTAMP}, 0")
        a(f"""
        s_and_b32 s{sT0}, s2, 7
        s_lshr_b32 s{sT1}, s2, 3
        s_lshl_b32 s{sMT}, s{sT0}, 2
        s_and_b32 s{sT2}, s{sT1}, 3
        s_add_u32 s{sMT}, s{sMT}, s{sT2}
        s_lshr_b32 s{sNT}, s{sT1}, 2
        """)
        if self.p1map == 0:
            a(f"""
            s_lshr_b32 s{sRB}, s{sT0}, 2
            s_lshl_b32 s{sRB}, s{sRB}, 3
            s_and_b32 s{sT2}, s{sT1}, 7
            s_add_u32 s{sRB}, s{sRB}, s{sT2}
            s_and_b32 s{sCG}, s{sT0}, 3
            s_lshl_b32 s{sCG}, s{sCG}, 1
            s_bfe_u32 s{sT2}, s{sT1}, 0x10003
            s_add_u32 s{sCG}, s{sCG}, s{sT2}
            """)
        elif self.p1map == 1:
            a(f"""
            s_lshl_b32 s{sRB}, s{sT0}, 1
            s_and_b32 s{sT2}, s{sT1}, 1
            s_add_u32 s{sRB}, s{sRB}, s{sT2}
            s_bfe_u32 s{sCG}, s{sT1}, 0x30001
            """)
        else:
            a(f"""
            s_lshr_b32 s{sRB}, s{sT0}, 1
            s_lshl_b32 s{sRB}, s{sRB}, 2
            s_and_b32 s{sT2}, s{sT1}, 3
            s_add_u32 s{sRB}, s{sRB}, s{sT2}
            s_and_b32 s{sCG}, s{sT0}, 1
            s_lshl_b32 s{sCG}, s{sCG}, 2
            s_bfe_u32 s{sT2}, s{sT1}, 0x20002
            s_add_u32 s{sCG}, s{sCG}, s{sT2}
            """)
        a(f"""
        v_lshrrev_b32 v2, 3, v{vLANE}
        v_and_b32 v3, 7, v{vLANE}
        v_lshrrev_b32 v4, 4, v{vLANE}
        v_xor_b32 v5, v3, v4
        v_lshlrev_b32 v5, 4, v5
        v_lshl_add_u32 v{vD}, v2, 11, v5
        v_xor_b32 v{vD+1}, 64, v{vD}
        s_lshl_b32 s{sT0}, s{sRB}, 17
        s_lshl_b32 s{sT1}, s{sW}, 15
        s_add_u32 s{sT0}, s{sT0}, s{sT1}
        s_sub_u32 s{sOFF}, s{sT0}, 128
        s_add_u32 s{sOFF+1}, s{sOFF}, 16384
        s_add_u32 s{sOFF+2}, s{sOFF}, 1024
        s_add_u32 s{sOFF+3}, s{sOFF}, 17408
        s_movk_i32 s{sINCA}, 128
        s_mul_i32 s{sWB}, s{sW}, {WR}
        s_mov_b32 s{sM0}, s{sWB}
        v_and_b32 v6, 1, v4
        v_lshlrev_b32 v6, 2, v6
        v_xor_b32 v6, v3, v6
        v_lshlrev_b32 v6, 4, v6
        s_waitcnt lgkmcnt(0)
        """)
        self.stamp(a, 0)
        self.mk_srd(a, rA, pX, 2097152)
        self.mk_srd(a, rWS, pWS, WS_SIZE)
        self.mk_srd(a, rDBG, pDBG, 256)
        a("s_bitcmp1_b32 s2, 7\ns_cbranch_scc1 L_ffn")

    def clear_flags_head(self, a, pre):
        a(f"""
        s_or_b32 s{sT0}, s2, s{sW}
        s_cmp_lg_u32 s{sT0}, 0
        s_cbranch_scc1 L_{pre}_noclr
        v_lshrrev_b32 v8, 2, v{vLANE}
        v_lshlrev_b32 v8, 7, v8
        v_and_b32 v9, 3, v{vLANE}
        v_lshl_add_u32 v8, v9, 4, v8
        v_mov_b32 v12, 0
        v_mov_b32 v13, 0
        v_mov_b32 v14, 0
        v_mov_b32 v15, 0
        s_mov_b32 s{sT0}, {WS_FLAGS}
        s_mov_b32 s{sT1}, {WS_FLAGS + 4096}
        buffer_store_dwordx4 v[12:15], v8, {srd(rWS)}, s{sT0} offen sc1
        buffer_store_dwordx4 v[12:15], v8, {srd(rWS)}, s{sT0} offen offset:2048 sc1
        buffer_store_dwordx4 v[12:15], v8, {srd(rWS)}, s{sT1} offen sc1
        buffer_store_dwordx4 v[12:15], v8, {srd(rWS)}, s{sT1} offen offset:2048 sc1
        L_{pre}_noclr:
        """)

    def clear_flags_tail(self, a, pre):
        a(f"""
        v_mov_b32 v{vONE}, 1
        s_or_b32 s{sT0}, s2, s{sW}
        s_cmp_lg_u32 s{sT0}, 0
        s_cbranch_scc1 L_{pre}_nogo
        s_waitcnt vmcnt(22)
        s_mov_b64 exec, 1
        buffer_store_dword v{vONE}, v{vL16}, {srd(rDBG)}, 0 offen sc1
        s_mov_b64 exec, -1
        L_{pre}_nogo:
        """)

    def p2_consts(self, a):
        a(f"""
        v_lshl_add_u32 v{vW2D}, v2, 10, v6
        v_and_b32 v7, 3, v2
        v_lshrrev_b32 v8, 2, v2
        v_lshl_add_u32 v7, v8, 3, v7
        v_lshl_add_u32 v{vWOD}, v7, 10, v6
        v_lshrrev_b32 v7, 5, v{vLANE}
        v_bfe_u32 v8, v{vLANE}, 2, 2
        v_lshl_add_u32 v7, v7, 2, v8
        v_lshlrev_b32 v7, 7, v7
        v_bfe_u32 v8, v{vLANE}, 4, 1
        v_lshl_add_u32 v7, v8, 5, v7
        v_and_b32 v8, 3, v{vLANE}
        v_lshl_add_u32 v7, v8, 3, v7
        v_bfe_u32 v8, v{vLANE}, 3, 1
        s_and_b32 s{sT0}, s{sW}, 1
        v_xor_b32 v8, s{sT0}, v8
        v_lshl_add_u32 v7, v8, 6, v7
        v_add_u32 v{vTR}, s{sWB}, v7
        v_xor_b32 v{vTR+1}, 64, v{vTR}
        v_add_u32 v{vTR+2}, {2*SL}, v{vTR}
        v_add_u32 v{vTR+3}, {2*SL}, v{vTR+1}
        s_mul_i32 s{sW2B}, s{sW}, {448*1024}
        s_lshl_b32 s{sT0}, s{sNT}, 7
        s_add_u32 s{sW2B}, s{sW2B}, s{sT0}
        s_lshl_b32 s{sWOB}, s{sW}, 17
        s_add_u32 s{sWOB}, s{sWOB}, s{sT0}
        """)
        self.mk_srd(a, rWO, pWO, 524288)
        self.mk_srd(a, rX2, pX, 2097152)
        self.mk_srd(a, rOUT, pOUT, 2097152)
        self.mk_srd(a, rB2, pB2, 1024)

    def dma_groups(self, spec):
        g = []
        for i, (v, cls, masked) in enumerate(spec):
            t = f"s_add_u32 m0, s{sM0}, {i*1024}\ns_add_u32 s{sOFF+i}, s{sOFF+i}, s{sINCA if cls=='A' else sINCB}\n"
            if masked: t += f"s_mov_b64 exec, s[{sEX}:{sEX+1}]\n"
            t += f"buffer_load_dwordx4 v{v}, {srd(rA if cls=='A' else rB)}, s{sOFF+i} offen lds\n"
            if masked: t += "s_mov_b64 exec, -1\n"
            g.append(G(t))
        return g

    def first_stages(self, a, spec):
        for st in range(2):
            for g in self.dma_groups(spec): a.extend(g)
            a(f"s_add_u32 s{sM0}, s{sM0}, {SL}")

    def loop_head(self, a, pre):
        a(f"""
        s_mov_b32 s{sST}, 0
        s_mov_b32 s{sRS}, 0
        L_{pre}_loop:
        s_cmp_eq_u32 s{sST}, 6
        s_cbranch_scc1 L_{pre}_switch
        L_{pre}_go:
        s_waitcnt vmcnt(11) lgkmcnt(0)
        s_barrier
        """)

    def loop_tail(self, a, pre):
        a(f"""
        s_add_u32 s{sM0}, s{sWB}, s{sRS}
        s_add_u32 s{sRS}, s{sRS}, {SL}
        s_cmp_eq_u32 s{sRS}, {3*SL}
        s_cselect_b32 s{sRS}, 0, s{sRS}
        s_add_u32 s{sST}, s{sST}, 1
        s_cmp_lt_u32 s{sST}, 8
        s_cbranch_scc1 L_{pre}_loop
        """)
        a.assume(vm=[f"c{c}" for c in range(22)])

    def switch_block(self, a, pre):
        a.label(f"L_{pre}_switch")
        for r in (rA, rB): a(f"s_mov_b32 s{r}, s{pW2}\ns_mov_b32 s{r+1}, s{pW2+1}\ns_mov_b32 s{r+2}, {1792*1024}")
        a(f"s_mov_b32 s{sINCA}, {11*8192}\ns_mov_b32 s{sINCB}, {11*8192}\ns_mov_b64 s[{sEX}:{sEX+1}], -1")
        for i in range(11): a(f"s_sub_u32 s{sOFF+i}, s{sW2B}, {(11-i)*8192}")
        for i in range(5): a(f"v_mov_b32 v{vD+i}, v{vW2D}")
        a(f"s_branch L_{pre}_go")

    @staticmethod
    def chunk_lds(c):
        idx = c % 33
        return ((2, 0, 1)[idx // 11]) * SL + (idx % 11) * 1024
    def tr_read(self, dst, c, half):
        off = self.chunk_lds(c)
        base = vTR + half + (2 if off >= 2 * SL else 0)
        if off >= 2 * SL: off -= 2 * SL
        return f"ds_read_b64_tr_b16 {dst}, v{base} offset:{off}"
    def w2_dma(self, c, after=()):
        if 40 <= c < 56: e = c - 40; v, r, sb, off = vWOD, rWO, sWOB, ((e >> 1) * 16 + (e & 1) * 4) * 1024
        else: v, r, sb, off = vW2D, rA, sW2B, (c if c < 40 else c - 16) * 8192
        g = G(f"s_add_u32 m0, s{sWB}, {self.chunk_lds(c)}\ns_add_u32 s{sT3}, s{sb}, {off}")
        return g + G(f"buffer_load_dwordx4 v{v}, {srd(r)}, s{sT3} offen lds", tag=f"c{c}", after=after)
    def w2_engine(self):
        steps = [self.w2_dma(c) for c in range(22, 33)]
        for c in range(41):
            g = []
            if c < 40:
                for h in range(2):
                    g += G(self.tr_read(ar(8 * (c >> 1) + 4 * h + 2 * (c & 1), 2), c, h), tag=f"r{c}", after=[f"c{c}"])
            if 1 <= c <= 39: g += self.w2_dma(c + 32, after=[f"r{c-1}"])
            if g: steps.append(g)
        return steps

    def ln_finalize(self, a, s1, s2, t, nm, sb, rs):
        n = range(len(s1))
        for i in n: a(f"v_mul_f32 v{s1[i]}, {fb(1/512)}, v{s1[i]}")
        for i in n: a(f"v_mul_f32 v{t[i]}, v{s1[i]}, v{s1[i]}")
        for i in n: a(f"v_mul_f32 v{s2[i]}, {fb(1/512)}, v{s2[i]}")
        for i in n: a(f"v_sub_f32 v{s2[i]}, v{s2[i]}, v{t[i]}")
        for i in n: a(f"v_max_f32 v{s2[i]}, 0, v{s2[i]}")
        for i in n: a(f"v_cvt_pk_bf16_f32 v{t[i]}, -v{s1[i]}, v{s2[i]}")
        for i in n: a(f"v_lshlrev_b32 v{nm[i]}, 16, v{t[i]}")
        for i in n: a(f"v_and_b32 v{t[i]}, 0xffff0000, v{t[i]}")
        for i in n: a(f"v_add_f32 v{t[i]}, {fb(1e-5)}, v{t[i]}")
        for i in n: a(f"v_cvt_pk_bf16_f32 v{t[i]}, v{t[i]}, v{t[i]}")
        for i in n: a(f"v_and_b32 v{t[i]}, 0xffff0000, v{t[i]}")
        for i in n: a(f"v_sqrt_f32 v{t[i]}, v{t[i]}")
        for i in n: a(f"v_cvt_pk_bf16_f32 v{t[i]}, v{t[i]}, v{t[i]}")
        for i in n: a(f"v_and_b32 v{sb[i]}, 0xffff0000, v{t[i]}")
        for i in n: a(f"v_rcp_f32 v{rs[i]}, v{sb[i]}")

    def go_load(self, a):
        a(f"v_mov_b32 v{vGO}, 0")
        a(f"buffer_load_dword v{vGO}, v{vGO}, {srd(rDBG)}, 0 offen sc1")

    def publish(self, a, pre, tags):
        a(f"""
        v_readfirstlane_b32 s{sT0}, v{vGO}
        s_cmp_eq_u32 s{sT0}, 0
        s_cbranch_scc1 L_{pre}_gospin
        L_{pre}_pub:
        """)
        a.wait(*tags)
        a(f"""
        s_mov_b64 exec, 1
        buffer_store_dword v{vONE}, v{vL16}, {srd(rWS)}, s{sFLG} offen sc1
        s_mov_b64 exec, -1
        """)

    def gospin(self, a, pre):
        a(f"""
        L_{pre}_gospin:
        s_mov_b32 s{sT1}, 0
        L_{pre}_gospin2:
        v_mov_b32 v{vGO}, 0
        buffer_load_dword v{vGO}, v{vGO}, {srd(rDBG)}, 0 offen sc1
        s_add_u32 s{sT1}, s{sT1}, 1
        s_waitcnt vmcnt(0)
        v_readfirstlane_b32 s{sT0}, v{vGO}
        s_cmp_ge_u32 s{sT1}, 0x100000
        s_cbranch_scc1 L_{pre}_pub
        s_cmp_eq_u32 s{sT0}, 0
        s_cbranch_scc1 L_{pre}_gospin2
        s_branch L_{pre}_pub
        """)

    def flag_addr(self, a, base):
        a(f"""
        s_lshl_b32 s{sFLG}, s{sRB}, 2
        s_lshr_b32 s{sT0}, s{sCG}, 1
        s_add_u32 s{sFLG}, s{sFLG}, s{sT0}
        s_lshl_b32 s{sFLG}, s{sFLG}, 5
        s_and_b32 s{sT0}, s{sCG}, 1
        s_lshl_b32 s{sT0}, s{sT0}, 2
        s_add_u32 s{sFLG}, s{sFLG}, s{sT0}
        s_add_u32 s{sFLG}, s{sFLG}, s{sW}
        s_lshl_b32 s{sFLG}, s{sFLG}, 2
        s_add_u32 s{sFLG}, s{sFLG}, {WS_FLAGS + 4*base}
        """)

    def split_weave(self, a, main, eng, n_in):
        a.extend(weave(main, eng[:n_in]))
        return eng[n_in:]

    def attention(self):
        a = self.a
        Q, K, V, STA = 0, 36, 72, 108
        xb, hb, st, wb, tA = 120, 121, 122, 125, 126
        bC, bP, bH0, bH1, mC, mP, one2, tbl = 132, 136, 140, 144, 148, 150, 152, 154
        FB = 136
        fX = lambda b, T: FB + 60 * b + 4 * T
        fS = lambda b, j: FB + 60 * b + 36 + 4 * j
        fW = lambda b, p: FB + 60 * b + 48 + 4 * p
        spec = [(vD, 'A', 0), (vD+1, 'A', 0), (vD, 'A', 0), (vD+1, 'A', 0), (vD+2, 'A', 1)] + [(vD+3+(i & 1), 'B', 0) for i in range(6)]
        self.mk_srd(a, rB, pQKV, 512*3072)
        a(f"""
        v_lshlrev_b32 v{vL16}, 4, v{vLANE}
        s_lshl_b32 s{sT0}, s{sW}, 2
        v_add_u32 v7, s{sT0}, v2
        v_and_b32 v8, 7, v7
        v_bfe_u32 v9, v7, 3, 1
        v_lshl_add_u32 v8, v8, 1, v9
        v_bfe_u32 v9, v7, 1, 3
        v_xor_b32 v9, v3, v9
        v_lshlrev_b32 v9, 4, v9
        v_lshl_add_u32 v{vD+2}, v8, 10, v9
        s_lshl_b32 s{sT0}, s{sRB}, 17
        s_sub_u32 s{sOFF+4}, s{sT0}, {16384+128}
        s_cmp_eq_u32 s{sRB}, 0
        s_cselect_b32 s{sOFF+4}, -128, s{sOFF+4}
        s_cselect_b32 s{sT0}, 0x40000000, 0
        v_or_b32 v{vD+2}, s{sT0}, v{vD+2}
        s_cmp_eq_u32 s{sW}, 0
        s_cselect_b32 s{sEX}, 0xffffff00, -1
        s_mov_b32 s{sEX+1}, 0
        v_and_b32 v7, 1, v4
        v_lshlrev_b32 v7, 1, v7
        v_xor_b32 v7, v3, v7
        v_lshlrev_b32 v7, 4, v7
        v_mul_u32_u24 v8, 3072, v2
        v_add_u32 v{vD+3}, v8, v7
        v_xor_b32 v{vD+4}, 64, v{vD+3}
        s_mov_b32 s{sINCB}, {64*3072}
        s_mul_i32 s{sT0}, s{sW}, {16*3072}
        s_lshl_b32 s{sT1}, s{sCG}, 7
        s_add_u32 s{sT0}, s{sT0}, s{sT1}
        s_sub_u32 s{sT0}, s{sT0}, s{sINCB}
        """)
        for i in range(6): a(f"s_add_u32 s{sOFF+5+i}, s{sT0}, {(i >> 1)*1024 + (i & 1)*8*3072}")
        self.clear_flags_head(a, "at")
        self.first_stages(a, spec)
        self.clear_flags_tail(a, "at")
        self.p2_consts(a)
        self.flag_addr(a, 0)
        a(f"""
        v_and_b32 v10, 15, v{vLANE}
        v_lshrrev_b32 v7, 1, v10
        v_xor_b32 v7, v4, v7
        v_lshlrev_b32 v7, 4, v7
        v_lshl_add_u32 v{xb}, v10, 7, v7
        v_lshrrev_b32 v8, 2, v10
        v_mul_u32_u24 v9, {WR}, v8
        v_and_b32 v11, 3, v10
        v_lshl_add_u32 v9, v11, 7, v9
        v_add_u32 v9, 4096, v9
        v_add_u32 v{hb}, v9, v7
        v_mul_u32_u24 v12, 3, v8
        v_add_u32 v12, v12, v11
        s_mul_i32 s{sT0}, s{sW}, 36
        v_add_u32 v12, s{sT0}, v12
        v_lshlrev_b32 v{tbl}, 2, v12
        v_add_u32 v{tbl}, {XT}, v{tbl}
        v_cmp_eq_u32 s[{sQ}:{sQ+1}], 1, v11
        v_cmp_eq_u32 s[{sQ+2}:{sQ+3}], 2, v11
        v_cmp_eq_u32 s[{sQ+4}:{sQ+5}], v4, v8
        v_cmp_eq_u32 vcc, 3, v11
        s_andn2_b64 s[{sQ+4}:{sQ+5}], s[{sQ+4}:{sQ+5}], vcc
        v_mov_b32 v16, 128
        """)
        for j in range(3):
            a(f"""
            v_add_u32 v13, {12*j}, v12
            v_cmp_eq_u32 vcc, 3, v11
            v_cndmask_b32 v13, v13, v16, vcc
            v_lshrrev_b32 v14, 5, v13
            v_mul_u32_u24 v14, {WR}, v14
            v_and_b32 v15, 31, v13
            v_lshl_add_u32 v14, v15, 7, v14
            v_bfe_u32 v17, v13, 2, 2
            v_mul_u32_u24 v17, {WR}, v17
            v_and_b32 v18, 3, v13
            v_lshl_add_u32 v17, v18, 7, v17
            v_add_u32 v17, 4096, v17
            v_cmp_le_u32 vcc, v16, v13
            v_cndmask_b32 v14, v14, v17, vcc
            v_bfe_u32 v15, v13, 1, 3
            v_xor_b32 v15, v4, v15
            v_lshl_add_u32 v{st+j}, v15, 4, v14
            """)
        a(f"""
        v_lshrrev_b32 v7, 1, v4
        v_mul_u32_u24 v7, {WR}, v7
        v_and_b32 v9, 1, v4
        v_lshl_add_u32 v7, v9, 10, v7
        v_lshl_add_u32 v7, v8, 7, v7
        v_lshl_add_u32 v7, v11, 3, v7
        v_lshrrev_b32 v13, 1, v8
        v_lshl_or_b32 v13, v9, 1, v13
        v_xor_b32 v13, s{sW}, v13
        v_lshl_add_u32 v7, v13, 5, v7
        v_add_u32 v{wb}, 5120, v7
        v_mov_b32 v12, 0x3f803f80
        v_mov_b32 v13, v12
        v_mov_b32 v14, v12
        v_mov_b32 v15, v12
        v_mov_b32 v{one2}, v12
        v_mov_b32 v{one2+1}, v12
        v_lshlrev_b32 v7, 4, v3
        v_add_u32 v9, {2*SL}, v7
        ds_write_b128 v7, v[12:15] offset:4096
        ds_write_b128 v7, v[12:15] offset:{4096+SL}
        ds_write_b128 v9, v[12:15] offset:4096
        v_lshlrev_b32 v7, 2, v4
        v_sub_u32 v7, v10, v7
        v_mov_b32 v16, {NEG}
        s_cmp_eq_u32 s{sRB}, 0
        s_cselect_b32 s{sT0}, {NEG}, 0
        v_mov_b32 v17, s{sT0}
        v_mov_b32 v18, 0
        """)
        for r in range(4):
            a(f"""
            v_subrev_u32 v9, {r}, v7
            v_cmp_ge_u32 vcc, 7, v9
            v_cndmask_b32 v{bC+r}, v16, v18, vcc
            v_cmp_ge_i32 vcc, -9, v9
            v_cndmask_b32 v{bP+r}, v16, v18, vcc
            v_cndmask_b32 v{bH1+r}, v16, v17, vcc
            v_cmp_gt_i32 vcc, 0, v9
            v_cndmask_b32 v{bH0+r}, v16, v17, vcc
            v_ashrrev_i32 v{20+r}, 31, v9
            v_cmp_le_u32 vcc, 2, v4
            v_cndmask_b32 v{bH0+r}, v{bH0+r}, v16, vcc
            """)
        a(f"""
        s_mov_b32 s{sT0}, 0xffff
        v_bfi_b32 v{mP}, s{sT0}, v20, v21
        v_bfi_b32 v{mP+1}, s{sT0}, v22, v23
        v_not_b32 v{mC}, v{mP}
        v_not_b32 v{mC+1}, v{mP+1}
        s_lshl_b32 s{sSTO}, s{sRB}, 1
        s_mul_i32 s{sSTO}, s{sSTO}, 144
        s_lshl_b32 s{sT0}, s{sCG}, 2
        s_add_u32 s{sSTO}, s{sSTO}, s{sT0}
        s_add_u32 s{sSTO}, s{sSTO}, s{sW}
        s_lshl_b32 s{sSTO}, s{sSTO}, 11
        """)
        for r in range(120): a(f"v_mov_b32 v{r}, 0")
        for r in range(60): a(f"v_accvgpr_write_b32 a{FB+60+r}, 0")
        self.stamp(a, 1)

        def reads(b):
            op = (lambda d, s: f"v_xad_u32 v{d}, v{s}, 64, s{sRS}") if b else (lambda d, s: f"v_add_u32 v{d}, s{sRS}, v{s}")
            g = []
            w = G(f"v_add_u32 v{tA+5}, s{sRS}, v{wb}")
            for p in range(3):
                for e in range(2):
                    w += G(f"ds_read_b64_tr_b16 {ar(fW(b,p)+2*e,2)}, v{tA+5} offset:{2*b*WR + p*2048 + e*512}")
                    g.append(w); w = []
            w = G(op(tA, xb))
            for T in range(8):
                g.append(w + G(f"ds_read_b128 {ar(fX(b,T),4)}, v{tA} offset:{(T>>1)*WR + (T&1)*2048}")); w = []
            g.append(G(op(tA+1, hb) + f"\nds_read_b128 {ar(fX(b,8),4)}, v{tA+1}"))
            for j in range(3): g.append(G(op(tA+2+j, st+j) + f"\nds_read_b128 {ar(fS(b,j),4)}, v{tA+2+j}"))
            return g
        def mfmas(b):
            g = []
            for T in range(9):
                g.append(G(f"v_mfma_f32_16x16x32_bf16 {vr(Q+4*T,4)}, {ar(fW(b,0),4)}, {ar(fX(b,T),4)}, {vr(Q+4*T,4)}"))
                g.append(G(f"v_mfma_f32_16x16x32_bf16 {vr(K+4*T,4)}, {ar(fW(b,1),4)}, {ar(fX(b,T),4)}, {vr(K+4*T,4)}"))
                g.append(G(f"v_mfma_f32_16x16x32_bf16 {vr(V+4*T,4)}, {ar(fX(b,T),4)}, {ar(fW(b,2),4)}, {vr(V+4*T,4)}"))
            for j in range(3):
                g.append(G(f"v_mfma_f32_16x16x32_bf16 {vr(STA+4*j,4)}, {ar(fS(b,j),4)}, {ar(fS(b,j),4)}, {vr(STA+4*j,4)}"))
            return g
        self.loop_head(a, "at")
        dm = self.dma_groups(spec)
        for b, d in ((0, dm[:6]), (1, dm[6:])):
            m = mfmas(1 - b); r = reads(b)
            first = [x for x in m[:18]]
            for i in range(18): first[i] = first[i] + r[i]
            rest = weave(m[18:], d)
            for x in first: a.extend(x)
            a.extend(rest)
            if b == 0: a("s_waitcnt lgkmcnt(0)")
        self.loop_tail(a, "at")
        self.stamp(a, 2)
        m = mfmas(1)
        for x in m[27:] + m[:27]: a.extend(x)
        self.go_load(a)
        t0 = 160
        for j in range(3):
            a(f"v_cndmask_b32 v{STA+4*j}, v{STA+4*j}, v{STA+4*j+1}, s[{sQ}:{sQ+1}]")
        for j in range(3):
            a(f"v_cndmask_b32 v{STA+4*j}, v{STA+4*j}, v{STA+4*j+2}, s[{sQ+2}:{sQ+3}]")
        self.ln_finalize(a, [STA+4*j+3 for j in range(3)], [STA+4*j for j in range(3)], [t0+j for j in range(3)],
                         [STA+4*j+1 for j in range(3)], [t0+3+j for j in range(3)], [STA+4*j+2 for j in range(3)])
        a(f"s_mov_b64 exec, s[{sQ+4}:{sQ+5}]")
        for j in range(3): a(f"ds_write2_b32 v{tbl}, v{STA+4*j+1}, v{STA+4*j+2} offset0:{12*j} offset1:{144+12*j}")
        a("s_mov_b64 exec, -1")
        csq, csk, csv, sA, Vp, sBuf, SP, aA, aB = 156, 160, 164, 166, 184, 204, 204, 120, 121
        for r in range(4):
            a(f"v_mov_b32_dpp v{csq+r}, v{Q+32+r} row_newbcast:0 row_mask:0xf bank_mask:0xf")
            a(f"v_mov_b32_dpp v{csk+r}, v{K+32+r} row_newbcast:0 row_mask:0xf bank_mask:0xf")
        a(f"""
        v_and_b32 v{aA}, 15, v{vLANE}
        v_lshlrev_b32 v{aA}, 2, v{aA}
        ds_bpermute_b32 v{csv}, v{aA}, v{V+32}
        v_add_u32 v{aA}, {XT}, v{aA}
        v_and_b32 v{aB}, 48, v{vLANE}
        v_add_u32 v{aB}, {XT}, v{aB}
        s_waitcnt lgkmcnt(0)
        s_barrier
        """)
        eng = self.w2_engine()
        main = []
        def M(t): main.append(G(t))
        for T in range(9):
            M(f"ds_read_b32 v{sA+2*T}, v{aA} offset:{64*T}\nds_read_b32 v{sA+2*T+1}, v{aA} offset:{576+64*T}")
        def rdB(T): M(f"ds_read_b128 {vr(sBuf+8*(T%4),4)}, v{aB} offset:{64*T}\nds_read_b128 {vr(sBuf+8*(T%4)+4,4)}, v{aB} offset:{576+64*T}")
        for T in range(4): rdB(T)
        for T in range(9):
            s = vr(sA+2*T, 2)
            for h in range(2): M(f"v_pk_fma_f32 {vr(K+4*T+2*h,2)}, {vr(csk+2*h,2)}, {s}, {vr(K+4*T+2*h,2)} op_sel_hi:[1,0,1]")
            if T < 8:
                for h in range(2): M(f"v_pk_fma_f32 {vr(Q+4*T+2*h,2)}, {vr(csq+2*h,2)}, {s}, {vr(Q+4*T+2*h,2)} op_sel_hi:[1,0,1]")
            for h in range(2): M(f"v_pk_mul_f32 {vr(K+4*T+2*h,2)}, {vr(K+4*T+2*h,2)}, {s} op_sel:[0,1] op_sel_hi:[1,1]")
            if T < 8:
                for h in range(2): M(f"v_cvt_pk_bf16_f32 v{Q+4*T+h}, v{Q+4*T+2*h}, v{Q+4*T+2*h+1}")
                M(f"v_mul_f32 v{sA+2*T+1}, {fb(0.25*LOG2E)}, v{sA+2*T+1}")
            for h in range(2): M(f"v_cvt_pk_bf16_f32 v{K+4*T+h}, v{K+4*T+2*h}, v{K+4*T+2*h+1}")
        vp = lambda T: Vp + 10 * (T & 1) + 2 + 2 * (T >> 1) if T < 8 else Vp
        for T in range(9):
            sb = sBuf + 8 * (T % 4)
            for h in range(2): M(f"v_pk_fma_f32 {vr(V+4*T+2*h,2)}, {vr(sb+2*h,2)}, {vr(csv,2)}, {vr(V+4*T+2*h,2)} op_sel_hi:[1,0,1]")
            for h in range(2): M(f"v_pk_mul_f32 {vr(V+4*T+2*h,2)}, {vr(V+4*T+2*h,2)}, {vr(sb+4+2*h,2)}")
            if T + 4 < 9: rdB(T + 4)
            for h in range(2): M(f"v_cvt_pk_bf16_f32 v{vp(T)+h}, v{V+4*T+2*h}, v{V+4*T+2*h+1}")
        M(f"v_mov_b32 v{Vp+10}, v{Vp}\nv_mov_b32 v{Vp+11}, v{Vp+1}")
        for T in range(8):
            prev = T - 2 if T >= 2 else 8
            bias = bP if T >= 2 else (bH0, bH1)[T]
            M(f"v_mfma_f32_16x16x16_bf16 {vr(V+4*T,4)}, {vr(K+4*T,2)}, {vr(Q+4*T,2)}, {vr(bC,4)}")
            M(f"v_mfma_f32_16x16x16_bf16 {vr(SP+4*T,4)}, {vr(K+4*prev,2)}, {vr(Q+4*T,2)}, {vr(bias,4)}")
        mx = lambda T: Q + 4 * T + 2
        for T in range(8):
            for r in range(4): M(f"v_max_f32 v{V+4*T+r}, v{V+4*T+r}, v{SP+4*T+r}")
        for T in range(8): M(f"v_max3_f32 v{mx(T)}, v{V+4*T}, v{V+4*T+1}, v{V+4*T+2}")
        for T in range(8): M(f"v_max_f32 v{mx(T)}, v{mx(T)}, v{V+4*T+3}")
        for sw in ("32", "16"):
            for T in range(8): M(f"v_mov_b32 v{mx(T)+1}, v{mx(T)}")
            for T in range(8): M(f"v_permlane{sw}_swap_b32 v{mx(T)+1}, v{mx(T)}")
            for T in range(8): M(f"v_max_f32 v{mx(T)}, v{mx(T)}, v{mx(T)+1}")
        for T in range(8): M(f"v_mul_f32 v{sA+2*T}, -v{mx(T)}, v{sA+2*T+1}".replace("v_mul_f32", "v_mul_f32_e64"))
        for T in range(8):
            for h in range(2):
                M(f"v_pk_fma_f32 {vr(V+4*T+2*h,2)}, {vr(V+4*T+2*h,2)}, {vr(sA+2*T,2)}, {vr(sA+2*T,2)} op_sel:[0,1,0] op_sel_hi:[1,1,0]")
        for T in range(8):
            for r in range(4): M(f"v_exp_f32 v{V+4*T+r}, v{V+4*T+r}")
        for T in range(8):
            for h in range(2): M(f"v_cvt_pk_bf16_f32 v{V+4*T+h}, v{V+4*T+2*h}, v{V+4*T+2*h+1}")
        for T in range(8):
            for h in range(2): M(f"v_and_b32 v{SP+4*T+h}, v{mP+h}, v{V+4*T+h}")
            for h in range(2): M(f"v_and_b32 v{SP+4*T+2+h}, v{mC+h}, v{V+4*T+h}")
        for T in range(8):
            M(f"v_mfma_f32_16x16x16_bf16 {vr(K+4*T,4)}, {vr(one2,2)}, {vr(V+4*T,2)}, 0")
        for T in range(8):
            M(f"v_mfma_f32_16x16x32_bf16 {vr(Q+4*T,4)}, {vr(vp(T)-2,4)}, {vr(SP+4*T,4)}, 0")
        for T in range(8): M(f"v_rcp_f32 v{K+4*T}, v{K+4*T}")
        for T in range(8):
            for h in range(2): M(f"v_pk_mul_f32 {vr(Q+4*T+2*h,2)}, {vr(Q+4*T+2*h,2)}, {vr(K+4*T,2)} op_sel_hi:[1,0]")
        for T in range(8):
            for h in range(2): M(f"v_cvt_pk_bf16_f32 v{V+2*T+h}, v{Q+4*T+2*h}, v{Q+4*T+2*h+1}")
        for u in range(4):
            for h in range(2): M(f"v_permlane16_swap_b32 v{V+4*u+h}, v{V+4*u+2+h}")
        rest = self.split_weave(a, main, eng, self.o.get("at_in", 24))
        a(f"s_add_u32 s{sT0}, s{sSTO}, {144*2048}")
        for u in range(4):
            a(f"buffer_store_dwordx4 {vr(V+4*u,4)}, v{vL16}, {srd(rWS)}, s{sSTO if u < 2 else sT0} offen offset:{(u&1)*1024} sc1", tag="st")
        self.stamp(a, 3)
        k = self.o.get("at_after", 8)
        for g in rest[:k]: a.extend(g)
        self.publish(a, "at", ["st"])
        self.stamp(a, 4)
        for g in rest[k:]: a.extend(g)
        a("s_waitcnt lgkmcnt(0)\ns_branch L_p2")
        self.switch_block(a, "at")
        self.gospin(a, "at")

    def ffn(self):
        a = self.a
        a.label("L_ffn")
        a.assume(vm=[], lgkm=[])
        ACC, CS, SEL, S1, S2, TL, XF = 0, 112, 140, 144, 146, 148, 152
        xq, wb0, wb1, wbh, tA, vB1, ctw, ctr, ctb = 160, 164, 165, 166, 167, 172, 176, 177, 178
        fW = lambda b, j: 160 + 28 * b + 4 * j
        spec = [(vD, 'A', 0), (vD+1, 'A', 0), (vD, 'A', 0), (vD+1, 'A', 0)] + [(vD+2, 'B', 0)] * 6 + [(vD+3, 'B', 0)]
        self.mk_srd(a, rB, pW1, 512*3584)
        self.mk_srd(a, rB1, pB1, 3584)
        a(f"""
        v_lshlrev_b32 v{vL16}, 4, v{vLANE}
        v_mul_u32_u24 v8, 3584, v2
        v_add_u32 v{vD+2}, v8, v6
        v_lshrrev_b32 v7, 2, v{vLANE}
        v_mul_u32_u24 v7, 3584, v7
        v_and_b32 v8, 3, v{vLANE}
        v_lshl_add_u32 v{vD+3}, v8, 4, v7
        v_mov_b32 v{vD+4}, 0
        s_mov_b32 s{sINCB}, {64*3584}
        s_mul_i32 s{sT0}, s{sW}, {16*3584}
        s_mul_i32 s{sT1}, s{sCG}, 448
        s_add_u32 s{sT0}, s{sT0}, s{sT1}
        s_sub_u32 s{sT0}, s{sT0}, s{sINCB}
        s_bitcmp1_b32 s{sCG}, 0
        s_cselect_b32 s{sT2}, 0, 384
        s_add_u32 s{sOFF+10}, s{sT0}, s{sT2}
        s_bitcmp1_b32 s{sCG}, 0
        s_cselect_b32 s{sT2}, 64, 0
        s_add_u32 s{sT0}, s{sT0}, s{sT2}
        """)
        for i in range(6): a(f"s_add_u32 s{sOFF+4+i}, s{sT0}, {(i >> 1)*128 + (i & 1)*8*3584}")
        a(f"""
        v_lshlrev_b32 v7, 1, v{vGO}
        v_add_u32 v7, s{sT2}, v7
        v_subrev_u32 v8, 448, v7
        v_min_u32 v7, v7, v8
        buffer_load_ushort v{vB1}, v7, {srd(rB1)}, s{sT1} offen
        v_lshlrev_b32 v{ctb}, 5, v{vGO}
        v_add_u32 v{ctb}, {XT+16}, v{ctb}
        """)
        self.first_stages(a, spec)
        a(f"v_mov_b32 v{vONE}, 1")
        self.p2_consts(a)
        self.flag_addr(a, 8)
        a(f"""
        v_and_b32 v10, 31, v{vLANE}
        v_lshrrev_b32 v11, 5, v{vLANE}
        v_bfe_u32 v7, v{vLANE}, 1, 3
        s_lshl_b32 s{sT0}, s{sW}, 1
        v_xor_b32 v7, s{sT0}, v7
        v_xor_b32 v7, v11, v7
        v_lshlrev_b32 v7, 4, v7
        v_lshl_add_u32 v7, v10, 7, v7
        v_add_u32 v{xq}, s{sWB}, v7
        v_xor_b32 v{xq+1}, 32, v{xq}
        v_xor_b32 v{xq+2}, 64, v{xq}
        v_xor_b32 v{xq+3}, 96, v{xq}
        v_bfe_u32 v8, v{vLANE}, 2, 2
        v_bfe_u32 v9, v{vLANE}, 4, 1
        v_and_b32 v12, 3, v{vLANE}
        v_lshlrev_b32 v12, 3, v12
        v_lshl_add_u32 v12, v9, 5, v12
        v_lshl_add_u32 v7, v8, 7, v12
        v_lshl_add_u32 v7, v11, 10, v7
        v_bfe_u32 v13, v{vLANE}, 3, 1
        v_lshl_add_u32 v7, v13, 6, v7
        v_add_u32 v{wb0}, 4096, v7
        v_xor_b32 v{wb1}, 64, v{wb0}
        v_lshl_add_u32 v7, v8, 6, v12
        v_lshl_add_u32 v7, v11, 9, v7
        v_add_u32 v{wbh}, {4096+6144}, v7
        v_bfe_u32 v7, v{vLANE}, 2, 1
        v_cmp_eq_u32 vcc, v7, v9
        v_mov_b32 v8, 0x3f803f80
        v_cndmask_b32 v{SEL}, 0, v8, vcc
        v_mov_b32 v{SEL+1}, v{SEL}
        v_mov_b32 v{SEL+2}, v{SEL}
        v_mov_b32 v{SEL+3}, v{SEL}
        v_lshlrev_b32 v7, 5, v10
        s_lshl_b32 s{sT0}, s{sW}, 2
        s_add_u32 s{sT0}, s{sT0}, {XT}
        v_add_u32 v{ctw}, s{sT0}, v7
        v_lshl_add_u32 v7, v11, 4, v7
        v_add_u32 v{ctr}, {XT}, v7
        s_lshl_b32 s{sT0}, s{sRB}, 1
        s_lshr_b32 s{sT1}, s{sW}, 1
        s_add_u32 s{sT0}, s{sT0}, s{sT1}
        s_mul_i32 s{sT0}, s{sT0}, 144
        s_mul_i32 s{sT1}, s{sCG}, 14
        s_add_u32 s{sT0}, s{sT0}, s{sT1}
        s_add_u32 s{sT0}, s{sT0}, 32
        s_lshl_b32 s{sT0}, s{sT0}, 1
        s_and_b32 s{sT1}, s{sW}, 1
        s_add_u32 s{sT0}, s{sT0}, s{sT1}
        s_lshl_b32 s{sT0}, s{sT0}, 10
        s_bitcmp1_b32 s{sCG}, 0
        s_cselect_b32 s{sT1}, 4096, 0
        s_cselect_b32 s{sT2}, 0, {6*4096}
        s_add_u32 s{sSTO}, s{sT0}, s{sT1}
        s_add_u32 s{sSTO6}, s{sT0}, s{sT2}
        """)
        for q in range(4): a(f"s_xor_b32 s{sT0}, s{sW}, {q}\ns_mul_i32 s{sQ+q}, s{sT0}, {WR}")
        for r in list(range(140)) + [144, 145, 146, 147, 156, 157, 158, 159, vB1+1, vB1+2, vB1+3]: a(f"v_mov_b32 v{r}, 0")
        for r in range(28): a(f"v_accvgpr_write_b32 a{fW(1,0)+r}, 0")
        self.stamp(a, 1)

        def reads(q):
            b = q & 1
            g = [G(f"v_add_u32 v{tA}, s{sRS}, v{xq+q}\ns_add_u32 s{sT0}, s{sRS}, s{sQ+q}\nds_read_b128 {vr(XF+4*b,4)}, v{tA}")]
            for j in range(7):
                w = []
                if j < 2: w = G(f"v_add_u32 v{tA+1+j}, s{sT0}, v{wb0+j}")
                if j == 2: w = G(f"v_add_u32 v{tA+3}, s{sT0}, v{wbh}")
                for e in range(2):
                    if j < 6: w += G(f"ds_read_b64_tr_b16 {ar(fW(b,j)+2*e,2)}, v{tA+1+(j&1)} offset:{(j>>1)*2048 + e*512}")
                    else: w += G(f"ds_read_b64_tr_b16 {ar(fW(b,j)+2*e,2)}, v{tA+3} offset:{e*256}")
                g.append(w)
            return g
        def mfmas(q):
            b = q & 1; g = []
            for j in range(7):
                g.append(G(f"v_mfma_f32_32x32x16_bf16 {vr(ACC+16*j,16)}, {ar(fW(b,j),4)}, {vr(XF+4*b,4)}, {vr(ACC+16*j,16)}"))
            if q == 0:
                for j in range(7):
                    g.append(G(f"v_mfma_f32_16x16x32_bf16 {vr(CS+4*j,4)}, {vr(SEL,4)}, {ar(fW(b,j),4)}, {vr(CS+4*j,4)}"))
            return g
        def stats(q):
            b = q & 1; g = []
            for d in range(4):
                t = TL + 2 * (d & 1)
                g.append(G(f"v_lshlrev_b32 v{t}, 16, v{XF+4*b+d}\nv_and_b32 v{t+1}, 0xffff0000, v{XF+4*b+d}"))
                g.append(G(f"v_add_f32 v{S1}, v{S1}, v{t}\nv_add_f32 v{S1+1}, v{S1+1}, v{t+1}"))
                g.append(G(f"v_fmac_f32 v{S2}, v{t}, v{t}\nv_fmac_f32 v{S2+1}, v{t+1}, v{t+1}"))
            return g
        self.loop_head(a, "ff")
        dm = self.dma_groups(spec)
        dsplit = (dm[0:2], dm[2:7], dm[7:9], dm[9:11])
        for q in range(4):
            qm = (q + 3) & 3
            m = mfmas(qm); r = reads(q)
            for i in range(4): m[i] = m[i] + r[2*i] + r[2*i+1]
            fill = stats(qm) + dsplit[q]
            a.extend(weave(m, fill, start=3))
        self.loop_tail(a, "ff")
        self.stamp(a, 2)
        a.extend(weave(mfmas(3), stats(3)))
        self.go_load(a)
        nm, sb, rs, t, CC, BV = 148, 150, 149, 151, 152, 156
        a(f"""
        v_add_f32 v{S1}, v{S1}, v{S1+1}
        v_add_f32 v{S2}, v{S2}, v{S2+1}
        v_mov_b32 v{S1+1}, v{S1}
        v_mov_b32 v{S2+1}, v{S2}
        s_mov_b32 s{sT0}, 0x07060302
        """)
        for j in range(7): a(f"v_and_b32 v{CS+4*j+1}, 0xffff0000, v{CS+4*j}")
        a(f"v_permlane32_swap_b32 v{S1+1}, v{S1}\nv_permlane32_swap_b32 v{S2+1}, v{S2}")
        for j in range(7): a(f"v_sub_f32 v{CS+4*j+1}, v{CS+4*j}, v{CS+4*j+1}")
        for j in range(7): a(f"v_perm_b32 v{CS+4*j}, v{CS+4*j+1}, v{CS+4*j}, s{sT0}")
        for j in range(7): a(f"ds_write_b32 v{ctw}, v{CS+4*j} offset:{1024*j}")
        a(f"ds_write_b128 v{ctb}, {vr(vB1,4)}")
        a(f"v_add_f32 v{S1}, v{S1}, v{S1+1}\nv_add_f32 v{S2}, v{S2}, v{S2+1}")
        self.ln_finalize(a, [S1], [S2], [t], [nm], [sb], [rs])
        a("s_waitcnt lgkmcnt(0)\ns_barrier")
        for j in range(7): a(f"ds_read_b128 {ar(fW(0,j),4)}, v{ctr} offset:{1024*j}")
        a(f"""
        v_cmp_gt_u32 vcc, 32, v{vLANE}
        v_lshrrev_b32 v{t}, 16, v{nm}
        v_or_b32 v{t}, v{t}, v{nm}
        v_lshrrev_b32 v{BV}, 16, v{sb}
        v_cndmask_b32 v{BV}, v{BV}, v{t}, vcc
        v_cndmask_b32 v{BV+1}, 0, v{t}, vcc
        v_mov_b32 v{BV+2}, v{BV+1}
        v_mov_b32 v{BV+3}, v{BV+1}
        v_mul_f32 v{CC+1}, {fb(GC0)}, v{rs}
        v_mul_f32 v{t}, v{rs}, v{rs}
        v_mul_f32 v{CC}, {fb(0.044715)}, v{CC+1}
        v_mul_f32 v{CC}, v{CC}, v{t}
        """)
        eng = self.w2_engine()
        pre = [G(f"v_mfma_f32_32x32x16_bf16 {vr(ACC+16*j,16)}, {ar(fW(0,j),4)}, {vr(BV,4)}, {vr(ACC+16*j,16)}") for j in range(7)]
        eng = self.split_weave(a, pre, eng, 3)
        main = []
        def M(t, tag=None): main.append(G(t, tag))
        Z, O = 112, 128
        for j in range(7):
            for q2 in range(2):
                x0 = ACC + 16 * j + 8 * q2; z = Z + 8 * q2; o = O + 4 * ((2 * j + q2) % 3)
                P = range(0, 8, 2)
                for p in P: M(f"v_pk_mul_f32 {vr(z+p,2)}, {vr(x0+p,2)}, {vr(x0+p,2)}")
                for p in P: M(f"v_pk_fma_f32 {vr(z+p,2)}, {vr(z+p,2)}, {vr(CC,2)}, {vr(CC,2)} op_sel:[0,0,1] op_sel_hi:[1,0,1]")
                for p in P: M(f"v_pk_mul_f32 {vr(z+p,2)}, {vr(z+p,2)}, {vr(x0+p,2)}")
                for p in range(8): M(f"v_exp_f32 v{z+p}, v{z+p}")
                for p in P: M(f"v_pk_fma_f32 {vr(z+p,2)}, {vr(z+p,2)}, {vr(sb,2)}, {vr(sb,2)} op_sel_hi:[1,0,0]")
                for p in range(8): M(f"v_rcp_f32 v{z+p}, v{z+p}")
                for p in P: M(f"v_pk_mul_f32 {vr(z+p,2)}, {vr(z+p,2)}, {vr(x0+p,2)}")
                for p in P: M(f"v_cvt_pk_bf16_f32 v{o+p//2}, v{z+p}, v{z+p+1}")
                if j < 6:
                    if q2 == 0: M(f"s_add_u32 s{sT2}, s{sSTO}, {4096*j}")
                    M(f"buffer_store_dwordx4 {vr(o,4)}, v{vL16}, {srd(rWS)}, s{sT2} offen offset:{2048*q2} sc1", "st")
                else:
                    M(f"buffer_store_dwordx4 {vr(o,4)}, v{vL16}, {srd(rWS)}, s{sSTO6} offen offset:{2048*q2} sc1", "st")
        rest = self.split_weave(a, main, eng, self.o.get("ff_in", 30))
        self.stamp(a, 3)
        k = self.o.get("ff_after", 8)
        for g in rest[:k]: a.extend(g)
        self.publish(a, "ff", ["st"])
        self.stamp(a, 4)
        for g in rest[k:]: a.extend(g)
        a("s_waitcnt lgkmcnt(0)")

    def phase2(self):
        a = self.a
        a.label("L_p2")
        a.assume(vm=[], lgkm=[])
        AS, AY, WT, XR, BR, XU, vA, vXO, vF, vR, PT = 0, 64, 128, 144, 152, 160, 176, 178, 180, 182, 192
        sAB, sMK, sXO, sFL = sQ, sQ + 1, sQ + 2, sQ + 3
        a(f"""
        s_lshr_b32 s{sT0}, s{sW}, 1
        s_lshl_b32 s{sT1}, s{sT0}, 10
        v_add_u32 v{vA}, s{sT1}, v{vL16}
        v_xor_b32 v{vA+1}, 0x400, v{vA}
        s_lshl_b32 s{sXO}, s{sMT}, 1
        s_add_u32 s{sXO}, s{sXO}, s{sT0}
        s_lshl_b32 s{sXO}, s{sXO}, 15
        s_lshl_b32 s{sT1}, s{sNT}, 1
        s_and_b32 s{sT0}, s{sW}, 1
        s_add_u32 s{sT1}, s{sT1}, s{sT0}
        s_lshl_b32 s{sT1}, s{sT1}, 6
        s_add_u32 s{sXO}, s{sXO}, s{sT1}
        v_and_b32 v{vF}, 15, v{vLANE}
        v_bfe_u32 v{vXO}, v{vLANE}, 4, 1
        v_lshl_add_u32 v{vXO}, v{vF}, 1, v{vXO}
        v_lshlrev_b32 v{vXO}, 10, v{vXO}
        v_lshrrev_b32 v{vR}, 5, v{vLANE}
        v_lshlrev_b32 v{vR}, 3, v{vR}
        v_add_u32 v{vXO}, v{vXO}, v{vR}
        v_add_u32 v{vXO+1}, v{vXO}, v{vR}
        """)
        for i in range(4): a(f"buffer_load_dwordx2 {vr(BR+2*i,2)}, v{vR}, {srd(rB2)}, s{sT1} offen offset:{16*i}")
        for i in range(4): a(f"buffer_load_dwordx2 {vr(XR+2*i,2)}, v{vXO}, {srd(rX2)}, s{sXO} offen offset:{16*i}")
        a(f"""
        v_lshlrev_b32 v{vF+1}, 2, v{vF}
        s_lshr_b32 s{sFL}, s{sMT}, 1
        s_lshl_b32 s{sFL}, s{sFL}, 2
        s_add_u32 s{sFL}, s{sFL}, s{sW}
        s_lshl_b32 s{sFL}, s{sFL}, 7
        s_add_u32 s{sFL}, s{sFL}, {WS_FLAGS}
        s_bitcmp1_b32 s{sMT}, 0
        s_cselect_b32 s{sMK}, 0xccff, 0x33ff
        s_mul_i32 s{sAB}, s{sMT}, {144*2048}
        s_mov_b32 s{sT1}, 0
        L_poll:
        buffer_load_dword v{vF}, v{vF+1}, {srd(rWS)}, s{sFL} offen sc1
        s_add_u32 s{sT1}, s{sT1}, 1
        s_waitcnt vmcnt(0)
        v_cmp_eq_u32 vcc, 1, v{vF}
        s_cmp_ge_u32 s{sT1}, 0x100000
        s_cbranch_scc1 L_ready
        s_and_b32 s{sT0}, vcc_lo, s{sMK}
        s_cmp_lg_u32 s{sT0}, s{sMK}
        s_cbranch_scc1 L_poll
        L_ready:
        """.replace("s_cselect_b32 s%d, 0xccff, 0x33ff" % sMK, f"s_movk_i32 s{sMK}, 0x33ff\ns_cselect_b32 s{sMK}, 0xccff, s{sMK}"))
        self.stamp(a, 5)
        a(f"""
        s_lshl_b32 s{sT0}, s{sW}, 14
        s_add_u32 s{sT0}, s{sT0}, s{sAB}
        s_mul_i32 s{sT1}, s{sW}, {28*2048}
        s_add_u32 s{sAB}, s{sAB}, s{sT1}
        s_add_u32 s{sAB}, s{sAB}, {32*2048}
        """)
        order = [('s', k) for k in range(8)] + [('y', k) for k in range(20, 28)] + [('y', k) for k in range(20)]
        NB = 12
        stg = lambda n, b: 160 + 8 * (n % NB) + 4 * b
        def loads(n):
            kind, k = order[n]; g = []
            if k % 2 == 0: g += G(f"s_add_u32 s{sT2}, s{sT0 if kind=='s' else sAB}, {k*2048}")
            for b in range(2):
                g += G(f"buffer_load_dwordx4 {ar(stg(n,b),4)}, v{vA+b}, {srd(rWS)}, s{sT2} offen offset:{(k&1)*2048} sc1")
            return g
        def wreads(n):
            kind, k = order[n]
            c0 = 40 + 2 * k if kind == 's' else 2 * k + 16
            return [G(self.tr_read(vr(WT + 8 * (n & 1) + 4 * h + 2 * e, 2), c0 + e, h), tag=f"w{n}") for h in range(2) for e in range(2)]
        for n in range(NB): a.extend(loads(n))
        for g in wreads(0): a.extend(g)
        for i in range(8):
            a(f"v_lshlrev_b32 v{AY+2*i}, 16, v{BR+i}\nv_and_b32 v{AY+2*i+1}, 0xffff0000, v{BR+i}")
            a(f"v_lshlrev_b32 v{XU+2*i}, 16, v{XR+i}\nv_and_b32 v{XU+2*i+1}, 0xffff0000, v{XR+i}")
        a(f"v_add_u32 v{vR}, s{sWB}, v{vL16}\nv_add_u32 v{vR+1}, {2*SL}, v{vR}")
        for j in range(1, 4):
            a(f"s_xor_b32 s{sT1}, s{sW}, {j}\ns_mul_i32 s{sT1}, s{sT1}, {WR}\nv_add_u32 v{vR+2*j}, s{sT1}, v{vL16}\nv_add_u32 v{vR+2*j+1}, {2*SL}, v{vR+2*j}")
        def lds_at(base, c):
            off = self.chunk_lds(c)
            return (base + 1, off - 2 * SL) if off >= 2 * SL else (base, off)
        def part_write(acc, c0, after):
            g = []
            for j in range(1, 4):
                for i in range(4):
                    r, off = lds_at(vR, c0 + 4 * (j - 1) + i)
                    g.append(G(f"ds_write_b128 v{r}, {vr(acc+16*j+4*i,4)} offset:{off}", after=after))
            return g
        swr = part_write(AS, 40, ["w7"])
        for n, (kind, k) in enumerate(order):
            acc = AS if kind == 's' else AY
            m = []
            for b in range(2):
                for h in range(2):
                    d = vr(acc + 16 * (h + 2 * b), 16)
                    wf = vr(WT + 8 * (n & 1) + 4 * h, 4) if n < 16 else ar(8 * k + 4 * h, 4)
                    c = "0" if (n == 0 or (n == 8 and h + b > 0)) else d
                    m.append(G(f"v_mfma_f32_32x32x16_bf16 {d}, {wf}, {ar(stg(n,b),4)}, {c}"))
            if n + 1 < 16:
                w = wreads(n + 1)
                m[0] += w[0] + w[1]; m[1] += w[2] + w[3]
            if 18 <= n < 30: m[1] += swr[n - 18]
            if n + NB < len(order): m[3] += loads(n + NB)
            for x in m: a.extend(x)
        self.stamp(a, 6)
        for g in part_write(AY, 56, []): a.extend(g)
        a("s_waitcnt lgkmcnt(0)\ns_barrier")
        def part_read(dst, c0, j):
            for i in range(4):
                r, off = lds_at(vR + 2 * j, c0 + 4 * (j - 1) + i)
                a(f"ds_read_b128 {vr(dst+4*i,4)}, v{r} offset:{off}")
        for j in range(1, 4): part_read(AY + 16 * j, 56, j)
        for j in range(1, 4): part_read(AS + 16 * j, 40, j)
        P = range(0, 16, 2)
        for j in range(1, 4):
            for p in P: a(f"v_pk_add_f32 {vr(AY+p,2)}, {vr(AY+p,2)}, {vr(AY+16*j+p,2)}")
        a(f"v_mov_b32 v{vF}, {fb(-LOG2E)}")
        for p in P: a(f"v_pk_mul_f32 {vr(PT+p,2)}, {vr(AY+p,2)}, {vr(vF,2)} op_sel_hi:[1,0]")
        for p in range(16): a(f"v_exp_f32 v{PT+p}, v{PT+p}")
        for p in P: a(f"v_pk_add_f32 {vr(PT+p,2)}, {vr(PT+p,2)}, 1.0 op_sel_hi:[1,0]")
        for p in range(16): a(f"v_rcp_f32 v{PT+p}, v{PT+p}")
        for j in range(1, 4):
            for p in P: a(f"v_pk_add_f32 {vr(AS+p,2)}, {vr(AS+p,2)}, {vr(AS+16*j+p,2)}")
        for p in P: a(f"v_pk_mul_f32 {vr(PT+p,2)}, {vr(PT+p,2)}, {vr(AY+p,2)}")
        for p in P: a(f"v_pk_fma_f32 {vr(PT+p,2)}, {vr(PT+p,2)}, {vr(AS+p,2)}, {vr(XU+p,2)}")
        for p in P: a(f"v_cvt_pk_bf16_f32 v{XR+p//2}, v{PT+p}, v{PT+p+1}")
        for h in range(2):
            a(f"v_permlane32_swap_b32 v{XR+4*h}, v{XR+4*h+2}\nv_permlane32_swap_b32 v{XR+4*h+1}, v{XR+4*h+3}")
        for h in range(2):
            a(f"buffer_store_dwordx4 {vr(XR+4*h,4)}, v{vXO+1}, {srd(rOUT)}, s{sXO} offen offset:{32*h}")
        if self.stamps:
            a("s_waitcnt vmcnt(0)")
            self.stamp(a, 7)
            a(f"""
            s_lshl_b32 s{sT0}, s2, 2
            s_add_u32 s{sT0}, s{sT0}, s{sW}
            s_lshl_b32 s{sT0}, s{sT0}, 6
            s_add_u32 s{sT0}, s{sT0}, {WS_STAMPS}
            s_mov_b64 exec, 0xffff
            buffer_store_dword v{vSTAMP}, v{vF+1}, {srd(rWS)}, s{sT0} offen
            """)
        a("L_end:\ns_endpgm")
        self.switch_block(a, "ff")
        self.gospin(a, "ff")

    def build(self):
        self.prologue(); self.attention(); self.ffn(); self.phase2()
        body = self.a.finalize()
        head = open("cdna_kernels/" + NAME[:-7] + ".s.ref").read().split("; Override launch")[0]
        return (head + "; @launch grid=(256,1,1) block=(256,1,1) lds=163840\n"
                f'.amdgcn_target "amdgcn-amd-amdhsa--gfx950"\n.text\n.globl {NAME}\n.p2align 8\n.type {NAME},@function\n{NAME}:\n'
                + body +
                f'''.section .rodata,"a"
.p2align 6
.amdhsa_kernel {NAME}
  .amdhsa_next_free_vgpr 512
  .amdhsa_next_free_sgpr 102
  .amdhsa_accum_offset 256
  .amdhsa_group_segment_fixed_size 0
  .amdhsa_kernarg_size 88
  .amdhsa_user_sgpr_count 2
  .amdhsa_user_sgpr_kernarg_segment_ptr 1
  .amdhsa_system_sgpr_workgroup_id_x 1
.end_amdhsa_kernel
''')

if __name__ == "__main__":
    import argparse
    p = argparse.ArgumentParser()
    p.add_argument("out"); p.add_argument("--stamps", action="store_true"); p.add_argument("--p1map", type=int, default=0)
    p.add_argument("-o", action="append", default=[])
    x = p.parse_args()
    opts = {k: int(v) for k, v in (s.split("=") for s in x.o)}
    open(x.out, "w").write(Gen(x.stamps, x.p1map, opts).build())
```

```python
import sys, struct
from asmlib import *

NAME = "recurrent_scan__sliding_local_dilated__dense_activation_gelu__prompt_kernel"
SL, WR, XT = 45056, 11264, 135168
WS_FLAGS, WS_STAMPS, WS_SIZE = 0xA00000, 0xB00000, 0xC00000
def fb(x): return "0x%08x" % struct.unpack("<I", struct.pack("<f", x))[0]
LOG2E = 1.4426950408889634
GC0 = -2 * LOG2E * 0.7978845608028654
GC1 = GC0 * 0.044715
NEG = fb(-1e30)

pX, pQKV, pWO, pW1, pB1, pW2, pB2, pOUT, pDBG, pWS = 4, 6, 8, 12, 14, 16, 18, 20, 22, 24
rA, rB, rWS, rB1, rDBG, rWO, rX2, rOUT, rB2 = 28, 32, 36, 40, 44, 64, 68, 72, 76
sOFF, sINCA, sINCB, sM0, sST, sRS = 48, 59, 60, 61, 62, 63
sEX = 80
sW, sRB, sCG, sMT, sNT = 82, 83, 84, 85, 86
sT0, sT1, sT2, sT3 = 87, 88, 89, 3
sQ = 90
sWB, sW2B, sWOB, sSTO, sFLG = 96, 97, 98, 99, 100
sSTO6 = 101
sCLK = 26
vLANE, vL16, vW2D, vWOD, vTR = 255, 254, 253, 252, 248
vD = 243
vGO, vSTAMP, vONE = 242, 241, 240
def srd(r): return f"s[{r}:{r+3}]"
def vr(b, n): return f"v[{b}:{b+n-1}]"
def ar(b, n): return f"a[{b}:{b+n-1}]"

class Gen:
    def __init__(self, stamps=False, p1map=0, opts=None):
        self.a = Asm(); self.stamps = stamps; self.p1map = p1map; self.o = opts or {}

    def stamp(self, a, k):
        if self.stamps:
            a(f"s_memrealtime s[{sCLK}:{sCLK+1}]\ns_waitcnt lgkmcnt(0)\nv_writelane_b32 v{vSTAMP}, s{sCLK}, {k}")

    def mk_srd(self, a, r, p, size):
        a(f"s_mov_b32 s{r}, s{p}\ns_mov_b32 s{r+1}, s{p+1}\ns_mov_b32 s{r+2}, {size}\ns_mov_b32 s{r+3}, 0x20000")

    def prologue(self):
        a = self.a
        a(f"""
        s_cmp_ge_u32 s2, 256
        s_cbranch_scc1 L_end
        s_load_dwordx16 s[4:19], s[0:1], 0
        s_load_dwordx4 s[20:23], s[0:1], 64
        s_load_dwordx2 s[24:25], s[0:1], 80
        v_lshrrev_b32 v1, 6, v0
        v_and_b32 v{vLANE}, 63, v0
        v_readfirstlane_b32 s{sW}, v1
        v_mov_b32 v{vGO}, v0
        """)
        if self.stamps: a(f"v_mov_b32 v{vSTAMP}, 0")
        a(f"""
        s_and_b32 s{sT0}, s2, 7
        s_lshr_b32 s{sT1}, s2, 3
        s_lshl_b32 s{sMT}, s{sT0}, 2
        s_and_b32 s{sT2}, s{sT1}, 3
        s_add_u32 s{sMT}, s{sMT}, s{sT2}
        s_lshr_b32 s{sNT}, s{sT1}, 2
        """)
        if self.p1map == 0:
            a(f"""
            s_lshr_b32 s{sRB}, s{sT0}, 2
            s_lshl_b32 s{sRB}, s{sRB}, 3
            s_and_b32 s{sT2}, s{sT1}, 7
            s_add_u32 s{sRB}, s{sRB}, s{sT2}
            s_and_b32 s{sCG}, s{sT0}, 3
            s_lshl_b32 s{sCG}, s{sCG}, 1
            s_bfe_u32 s{sT2}, s{sT1}, 0x10003
            s_add_u32 s{sCG}, s{sCG}, s{sT2}
            """)
        elif self.p1map == 1:
            a(f"""
            s_lshl_b32 s{sRB}, s{sT0}, 1
            s_and_b32 s{sT2}, s{sT1}, 1
            s_add_u32 s{sRB}, s{sRB}, s{sT2}
            s_bfe_u32 s{sCG}, s{sT1}, 0x30001
            """)
        else:
            a(f"""
            s_lshr_b32 s{sRB}, s{sT0}, 1
            s_lshl_b32 s{sRB}, s{sRB}, 2
            s_and_b32 s{sT2}, s{sT1}, 3
            s_add_u32 s{sRB}, s{sRB}, s{sT2}
            s_and_b32 s{sCG}, s{sT0}, 1
            s_lshl_b32 s{sCG}, s{sCG}, 2
            s_bfe_u32 s{sT2}, s{sT1}, 0x20002
            s_add_u32 s{sCG}, s{sCG}, s{sT2}
            """)
        a(f"""
        v_lshrrev_b32 v2, 3, v{vLANE}
        v_and_b32 v3, 7, v{vLANE}
        v_lshrrev_b32 v4, 4, v{vLANE}
        v_xor_b32 v5, v3, v4
        v_lshlrev_b32 v5, 4, v5
        v_lshl_add_u32 v{vD}, v2, 11, v5
        v_xor_b32 v{vD+1}, 64, v{vD}
        s_lshl_b32 s{sT0}, s{sRB}, 17
        s_lshl_b32 s{sT1}, s{sW}, 15
        s_add_u32 s{sT0}, s{sT0}, s{sT1}
        s_sub_u32 s{sOFF}, s{sT0}, 128
        s_add_u32 s{sOFF+1}, s{sOFF}, 16384
        s_add_u32 s{sOFF+2}, s{sOFF}, 1024
        s_add_u32 s{sOFF+3}, s{sOFF}, 17408
        s_movk_i32 s{sINCA}, 128
        s_mul_i32 s{sWB}, s{sW}, {WR}
        s_mov_b32 s{sM0}, s{sWB}
        v_and_b32 v6, 1, v4
        v_lshlrev_b32 v6, 2, v6
        v_xor_b32 v6, v3, v6
        v_lshlrev_b32 v6, 4, v6
        s_waitcnt lgkmcnt(0)
        """)
        self.stamp(a, 0)
        self.mk_srd(a, rA, pX, 2097152)
        self.mk_srd(a, rWS, pWS, WS_SIZE)
        self.mk_srd(a, rDBG, pDBG, 256)
        a("s_bitcmp1_b32 s2, 7\ns_cbranch_scc1 L_ffn")

    def clear_flags_head(self, a, pre):
        a(f"""
        s_or_b32 s{sT0}, s2, s{sW}
        s_cmp_lg_u32 s{sT0}, 0
        s_cbranch_scc1 L_{pre}_noclr
        v_lshrrev_b32 v8, 2, v{vLANE}
        v_lshlrev_b32 v8, 7, v8
        v_and_b32 v9, 3, v{vLANE}
        v_lshl_add_u32 v8, v9, 4, v8
        v_mov_b32 v12, 0
        v_mov_b32 v13, 0
        v_mov_b32 v14, 0
        v_mov_b32 v15, 0
        s_mov_b32 s{sT0}, {WS_FLAGS}
        s_mov_b32 s{sT1}, {WS_FLAGS + 4096}
        buffer_store_dwordx4 v[12:15], v8, {srd(rWS)}, s{sT0} offen sc1
        buffer_store_dwordx4 v[12:15], v8, {srd(rWS)}, s{sT0} offen offset:2048 sc1
        buffer_store_dwordx4 v[12:15], v8, {srd(rWS)}, s{sT1} offen sc1
        buffer_store_dwordx4 v[12:15], v8, {srd(rWS)}, s{sT1} offen offset:2048 sc1
        L_{pre}_noclr:
        """)

    def clear_flags_tail(self, a, pre):
        a(f"""
        v_mov_b32 v{vONE}, 1
        s_or_b32 s{sT0}, s2, s{sW}
        s_cmp_lg_u32 s{sT0}, 0
        s_cbranch_scc1 L_{pre}_nogo
        s_waitcnt vmcnt(22)
        s_mov_b64 exec, 1
        buffer_store_dword v{vONE}, v{vL16}, {srd(rDBG)}, 0 offen sc1
        s_mov_b64 exec, -1
        L_{pre}_nogo:
        """)

    def p2_consts(self, a):
        a(f"""
        v_lshl_add_u32 v{vW2D}, v2, 10, v6
        v_and_b32 v7, 3, v2
        v_lshrrev_b32 v8, 2, v2
        v_lshl_add_u32 v7, v8, 3, v7
        v_lshl_add_u32 v{vWOD}, v7, 10, v6
        v_lshrrev_b32 v7, 5, v{vLANE}
        v_bfe_u32 v8, v{vLANE}, 2, 2
        v_lshl_add_u32 v7, v7, 2, v8
        v_lshlrev_b32 v7, 7, v7
        v_bfe_u32 v8, v{vLANE}, 4, 1
        v_lshl_add_u32 v7, v8, 5, v7
        v_and_b32 v8, 3, v{vLANE}
        v_lshl_add_u32 v7, v8, 3, v7
        v_bfe_u32 v8, v{vLANE}, 3, 1
        s_and_b32 s{sT0}, s{sW}, 1
        v_xor_b32 v8, s{sT0}, v8
        v_lshl_add_u32 v7, v8, 6, v7
        v_add_u32 v{vTR}, s{sWB}, v7
        v_xor_b32 v{vTR+1}, 64, v{vTR}
        v_add_u32 v{vTR+2}, {2*SL}, v{vTR}
        v_add_u32 v{vTR+3}, {2*SL}, v{vTR+1}
        s_mul_i32 s{sW2B}, s{sW}, {448*1024}
        s_lshl_b32 s{sT0}, s{sNT}, 7
        s_add_u32 s{sW2B}, s{sW2B}, s{sT0}
        s_lshl_b32 s{sWOB}, s{sW}, 17
        s_add_u32 s{sWOB}, s{sWOB}, s{sT0}
        """)
        self.mk_srd(a, rWO, pWO, 524288)
        self.mk_srd(a, rX2, pX, 2097152)
        self.mk_srd(a, rOUT, pOUT, 2097152)
        self.mk_srd(a, rB2, pB2, 1024)

    def dma_groups(self, spec):
        g = []
        for i, (v, cls, masked) in enumerate(spec):
            t = f"s_add_u32 m0, s{sM0}, {i*1024}\ns_add_u32 s{sOFF+i}, s{sOFF+i}, s{sINCA if cls=='A' else sINCB}\n"
            if masked: t += f"s_mov_b64 exec, s[{sEX}:{sEX+1}]\n"
            t += f"buffer_load_dwordx4 v{v}, {srd(rA if cls=='A' else rB)}, s{sOFF+i} offen lds\n"
            if masked: t += "s_mov_b64 exec, -1\n"
            g.append(G(t))
        return g

    def first_stages(self, a, spec):
        for st in range(2):
            for g in self.dma_groups(spec): a.extend(g)
            a(f"s_add_u32 s{sM0}, s{sM0}, {SL}")

    def loop_head(self, a, pre):
        a(f"""
        s_mov_b32 s{sST}, 0
        s_mov_b32 s{sRS}, 0
        L_{pre}_loop:
        s_cmp_eq_u32 s{sST}, 6
        s_cbranch_scc1 L_{pre}_switch
        L_{pre}_go:
        s_waitcnt vmcnt(11) lgkmcnt(0)
        s_barrier
        """)

    def loop_tail(self, a, pre):
        a(f"""
        s_add_u32 s{sM0}, s{sWB}, s{sRS}
        s_add_u32 s{sRS}, s{sRS}, {SL}
        s_cmp_eq_u32 s{sRS}, {3*SL}
        s_cselect_b32 s{sRS}, 0, s{sRS}
        s_add_u32 s{sST}, s{sST}, 1
        s_cmp_lt_u32 s{sST}, 8
        s_cbranch_scc1 L_{pre}_loop
        """)
        a.assume(vm=[f"c{c}" for c in range(22)])

    def switch_block(self, a, pre):
        a.label(f"L_{pre}_switch")
        for r in (rA, rB): a(f"s_mov_b32 s{r}, s{pW2}\ns_mov_b32 s{r+1}, s{pW2+1}\ns_mov_b32 s{r+2}, {1792*1024}")
        a(f"s_mov_b32 s{sINCA}, {11*8192}\ns_mov_b32 s{sINCB}, {11*8192}\ns_mov_b64 s[{sEX}:{sEX+1}], -1")
        for i in range(11): a(f"s_sub_u32 s{sOFF+i}, s{sW2B}, {(11-i)*8192}")
        for i in range(5): a(f"v_mov_b32 v{vD+i}, v{vW2D}")
        a(f"s_branch L_{pre}_go")

    @staticmethod
    def chunk_lds(c):
        idx = c % 33
        return ((2, 0, 1)[idx // 11]) * SL + (idx % 11) * 1024
    def tr_read(self, dst, c, half):
        off = self.chunk_lds(c)
        base = vTR + half + (2 if off >= 2 * SL else 0)
        if off >= 2 * SL: off -= 2 * SL
        return f"ds_read_b64_tr_b16 {dst}, v{base} offset:{off}"
    def w2_dma(self, c, after=()):
        if 40 <= c < 56: e = c - 40; v, r, sb, off = vWOD, rWO, sWOB, ((e >> 1) * 16 + (e & 1) * 4) * 1024
        else: v, r, sb, off = vW2D, rA, sW2B, (c if c < 40 else c - 16) * 8192
        g = G(f"s_add_u32 m0, s{sWB}, {self.chunk_lds(c)}\ns_add_u32 s{sT3}, s{sb}, {off}")
        return g + G(f"buffer_load_dwordx4 v{v}, {srd(r)}, s{sT3} offen lds", tag=f"c{c}", after=after)
    def w2_engine(self):
        steps = [self.w2_dma(c) for c in range(22, 33)]
        for c in range(41):
            g = []
            if c < 40:
                for h in range(2):
                    g += G(self.tr_read(ar(8 * (c >> 1) + 4 * h + 2 * (c & 1), 2), c, h), tag=f"r{c}", after=[f"c{c}"])
            if 1 <= c <= 39: g += self.w2_dma(c + 32, after=[f"r{c-1}"])
            if g: steps.append(g)
        return steps

    def ln_finalize(self, a, s1, s2, t, nm, sb, rs):
        n = range(len(s1))
        for i in n: a(f"v_mul_f32 v{s1[i]}, {fb(1/512)}, v{s1[i]}")
        for i in n: a(f"v_mul_f32 v{t[i]}, v{s1[i]}, v{s1[i]}")
        for i in n: a(f"v_mul_f32 v{s2[i]}, {fb(1/512)}, v{s2[i]}")
        for i in n: a(f"v_sub_f32 v{s2[i]}, v{s2[i]}, v{t[i]}")
        for i in n: a(f"v_max_f32 v{s2[i]}, 0, v{s2[i]}")
        for i in n: a(f"v_cvt_pk_bf16_f32 v{t[i]}, -v{s1[i]}, v{s2[i]}")
        for i in n: a(f"v_lshlrev_b32 v{nm[i]}, 16, v{t[i]}")
        for i in n: a(f"v_and_b32 v{t[i]}, 0xffff0000, v{t[i]}")
        for i in n: a(f"v_add_f32 v{t[i]}, {fb(1e-5)}, v{t[i]}")
        for i in n: a(f"v_cvt_pk_bf16_f32 v{t[i]}, v{t[i]}, v{t[i]}")
        for i in n: a(f"v_and_b32 v{t[i]}, 0xffff0000, v{t[i]}")
        for i in n: a(f"v_sqrt_f32 v{t[i]}, v{t[i]}")
        for i in n: a(f"v_cvt_pk_bf16_f32 v{t[i]}, v{t[i]}, v{t[i]}")
        for i in n: a(f"v_and_b32 v{sb[i]}, 0xffff0000, v{t[i]}")
        for i in n: a(f"v_rcp_f32 v{rs[i]}, v{sb[i]}")

    def go_load(self, a):
        a(f"v_mov_b32 v{vGO}, 0")
        a(f"buffer_load_dword v{vGO}, v{vGO}, {srd(rDBG)}, 0 offen sc1")

    def publish(self, a, pre, tags):
        a(f"""
        v_readfirstlane_b32 s{sT0}, v{vGO}
        s_cmp_eq_u32 s{sT0}, 0
        s_cbranch_scc1 L_{pre}_gospin
        L_{pre}_pub:
        """)
        a.wait(*tags)
        a(f"""
        s_mov_b64 exec, 1
        buffer_store_dword v{vONE}, v{vL16}, {srd(rWS)}, s{sFLG} offen sc1
        s_mov_b64 exec, -1
        """)

    def gospin(self, a, pre):
        a(f"""
        L_{pre}_gospin:
        s_mov_b32 s{sT1}, 0
        L_{pre}_gospin2:
        v_mov_b32 v{vGO}, 0
        buffer_load_dword v{vGO}, v{vGO}, {srd(rDBG)}, 0 offen sc1
        s_add_u32 s{sT1}, s{sT1}, 1
        s_waitcnt vmcnt(0)
        v_readfirstlane_b32 s{sT0}, v{vGO}
        s_cmp_ge_u32 s{sT1}, 0x100000
        s_cbranch_scc1 L_{pre}_pub
        s_cmp_eq_u32 s{sT0}, 0
        s_cbranch_scc1 L_{pre}_gospin2
        s_branch L_{pre}_pub
        """)

    def flag_addr(self, a, base):
        a(f"""
        s_lshl_b32 s{sFLG}, s{sRB}, 2
        s_lshr_b32 s{sT0}, s{sCG}, 1
        s_add_u32 s{sFLG}, s{sFLG}, s{sT0}
        s_lshl_b32 s{sFLG}, s{sFLG}, 5
        s_and_b32 s{sT0}, s{sCG}, 1
        s_lshl_b32 s{sT0}, s{sT0}, 2
        s_add_u32 s{sFLG}, s{sFLG}, s{sT0}
        s_add_u32 s{sFLG}, s{sFLG}, s{sW}
        s_lshl_b32 s{sFLG}, s{sFLG}, 2
        s_add_u32 s{sFLG}, s{sFLG}, {WS_FLAGS + 4*base}
        """)

    def split_weave(self, a, main, eng, n_in):
        a.extend(weave(main, eng[:n_in]))
        return eng[n_in:]

    def attention(self):
        a = self.a
        Q, K, V, STA = 0, 36, 72, 108
        xb, hb, st, wb, tA = 120, 121, 122, 125, 126
        bC, bP, bH0, bH1, mC, mP, one2, tbl = 132, 136, 140, 144, 148, 150, 152, 154
        FB = 136
        fX = lambda b, T: FB + 60 * b + 4 * T
        fS = lambda b, j: FB + 60 * b + 36 + 4 * j
        fW = lambda b, p: FB + 60 * b + 48 + 4 * p
        spec = [(vD, 'A', 0), (vD+1, 'A', 0), (vD, 'A', 0), (vD+1, 'A', 0), (vD+2, 'A', 1)] + [(vD+3+(i & 1), 'B', 0) for i in range(6)]
        self.mk_srd(a, rB, pQKV, 512*3072)
        a(f"""
        v_lshlrev_b32 v{vL16}, 4, v{vLANE}
        s_lshl_b32 s{sT0}, s{sW}, 2
        v_add_u32 v7, s{sT0}, v2
        v_and_b32 v8, 7, v7
        v_bfe_u32 v9, v7, 3, 1
        v_lshl_add_u32 v8, v8, 1, v9
        v_bfe_u32 v9, v7, 1, 3
        v_xor_b32 v9, v3, v9
        v_lshlrev_b32 v9, 4, v9
        v_lshl_add_u32 v{vD+2}, v8, 10, v9
        s_lshl_b32 s{sT0}, s{sRB}, 17
        s_sub_u32 s{sOFF+4}, s{sT0}, {16384+128}
        s_cmp_eq_u32 s{sRB}, 0
        s_cselect_b32 s{sOFF+4}, -128, s{sOFF+4}
        s_cselect_b32 s{sT0}, 0x40000000, 0
        v_or_b32 v{vD+2}, s{sT0}, v{vD+2}
        s_cmp_eq_u32 s{sW}, 0
        s_cselect_b32 s{sEX}, 0xffffff00, -1
        s_mov_b32 s{sEX+1}, 0
        v_and_b32 v7, 1, v4
        v_lshlrev_b32 v7, 1, v7
        v_xor_b32 v7, v3, v7
        v_lshlrev_b32 v7, 4, v7
        v_mul_u32_u24 v8, 3072, v2
        v_add_u32 v{vD+3}, v8, v7
        v_xor_b32 v{vD+4}, 64, v{vD+3}
        s_mov_b32 s{sINCB}, {64*3072}
        s_mul_i32 s{sT0}, s{sW}, {16*3072}
        s_lshl_b32 s{sT1}, s{sCG}, 7
        s_add_u32 s{sT0}, s{sT0}, s{sT1}
        s_sub_u32 s{sT0}, s{sT0}, s{sINCB}
        """)
        for i in range(6): a(f"s_add_u32 s{sOFF+5+i}, s{sT0}, {(i >> 1)*1024 + (i & 1)*8*3072}")
        self.clear_flags_head(a, "at")
        self.first_stages(a, spec)
        self.clear_flags_tail(a, "at")
        self.p2_consts(a)
        self.flag_addr(a, 0)
        a(f"""
        v_and_b32 v10, 15, v{vLANE}
        v_lshrrev_b32 v7, 1, v10
        v_xor_b32 v7, v4, v7
        v_lshlrev_b32 v7, 4, v7
        v_lshl_add_u32 v{xb}, v10, 7, v7
        v_lshrrev_b32 v8, 2, v10
        v_mul_u32_u24 v9, {WR}, v8
        v_and_b32 v11, 3, v10
        v_lshl_add_u32 v9, v11, 7, v9
        v_add_u32 v9, 4096, v9
        v_add_u32 v{hb}, v9, v7
        v_mul_u32_u24 v12, 3, v8
        v_add_u32 v12, v12, v11
        s_mul_i32 s{sT0}, s{sW}, 36
        v_add_u32 v12, s{sT0}, v12
        v_lshlrev_b32 v{tbl}, 2, v12
        v_add_u32 v{tbl}, {XT}, v{tbl}
        v_cmp_eq_u32 s[{sQ}:{sQ+1}], 1, v11
        v_cmp_eq_u32 s[{sQ+2}:{sQ+3}], 2, v11
        v_cmp_eq_u32 s[{sQ+4}:{sQ+5}], v4, v8
        v_cmp_eq_u32 vcc, 3, v11
        s_andn2_b64 s[{sQ+4}:{sQ+5}], s[{sQ+4}:{sQ+5}], vcc
        v_mov_b32 v16, 128
        """)
        for j in range(3):
            a(f"""
            v_add_u32 v13, {12*j}, v12
            v_cmp_eq_u32 vcc, 3, v11
            v_cndmask_b32 v13, v13, v16, vcc
            v_lshrrev_b32 v14, 5, v13
            v_mul_u32_u24 v14, {WR}, v14
            v_and_b32 v15, 31, v13
            v_lshl_add_u32 v14, v15, 7, v14
            v_bfe_u32 v17, v13, 2, 2
            v_mul_u32_u24 v17, {WR}, v17
            v_and_b32 v18, 3, v13
            v_lshl_add_u32 v17, v18, 7, v17
            v_add_u32 v17, 4096, v17
            v_cmp_le_u32 vcc, v16, v13
            v_cndmask_b32 v14, v14, v17, vcc
            v_bfe_u32 v15, v13, 1, 3
            v_xor_b32 v15, v4, v15
            v_lshl_add_u32 v{st+j}, v15, 4, v14
            """)
        a(f"""
        v_lshrrev_b32 v7, 1, v4
        v_mul_u32_u24 v7, {WR}, v7
        v_and_b32 v9, 1, v4
        v_lshl_add_u32 v7, v9, 10, v7
        v_lshl_add_u32 v7, v8, 7, v7
        v_lshl_add_u32 v7, v11, 3, v7
        v_lshrrev_b32 v13, 1, v8
        v_lshl_or_b32 v13, v9, 1, v13
        v_xor_b32 v13, s{sW}, v13
        v_lshl_add_u32 v7, v13, 5, v7
        v_add_u32 v{wb}, 5120, v7
        v_mov_b32 v12, 0x3f803f80
        v_mov_b32 v13, v12
        v_mov_b32 v14, v12
        v_mov_b32 v15, v12
        v_mov_b32 v{one2}, v12
        v_mov_b32 v{one2+1}, v12
        v_lshlrev_b32 v7, 4, v3
        v_add_u32 v9, {2*SL}, v7
        ds_write_b128 v7, v[12:15] offset:4096
        ds_write_b128 v7, v[12:15] offset:{4096+SL}
        ds_write_b128 v9, v[12:15] offset:4096
        v_lshlrev_b32 v7, 2, v4
        v_sub_u32 v7, v10, v7
        v_mov_b32 v16, {NEG}
        s_cmp_eq_u32 s{sRB}, 0
        s_cselect_b32 s{sT0}, {NEG}, 0
        v_mov_b32 v17, s{sT0}
        v_mov_b32 v18, 0
        """)
        for r in range(4):
            a(f"""
            v_subrev_u32 v9, {r}, v7
            v_cmp_ge_u32 vcc, 7, v9
            v_cndmask_b32 v{bC+r}, v16, v18, vcc
            v_cmp_ge_i32 vcc, -9, v9
            v_cndmask_b32 v{bP+r}, v16, v18, vcc
            v_cndmask_b32 v{bH1+r}, v16, v17, vcc
            v_cmp_gt_i32 vcc, 0, v9
            v_cndmask_b32 v{bH0+r}, v16, v17, vcc
            v_ashrrev_i32 v{20+r}, 31, v9
            v_cmp_le_u32 vcc, 2, v4
            v_cndmask_b32 v{bH0+r}, v{bH0+r}, v16, vcc
            """)
        a(f"""
        s_mov_b32 s{sT0}, 0xffff
        v_bfi_b32 v{mP}, s{sT0}, v20, v21
        v_bfi_b32 v{mP+1}, s{sT0}, v22, v23
        v_not_b32 v{mC}, v{mP}
        v_not_b32 v{mC+1}, v{mP+1}
        s_lshl_b32 s{sSTO}, s{sRB}, 1
        s_mul_i32 s{sSTO}, s{sSTO}, 144
        s_lshl_b32 s{sT0}, s{sCG}, 2
        s_add_u32 s{sSTO}, s{sSTO}, s{sT0}
        s_add_u32 s{sSTO}, s{sSTO}, s{sW}
        s_lshl_b32 s{sSTO}, s{sSTO}, 11
        """)
        for r in range(120): a(f"v_mov_b32 v{r}, 0")
        for r in range(60): a(f"v_accvgpr_write_b32 a{FB+60+r}, 0")
        self.stamp(a, 1)

        def reads(b):
            op = (lambda d, s: f"v_xad_u32 v{d}, v{s}, 64, s{sRS}") if b else (lambda d, s: f"v_add_u32 v{d}, s{sRS}, v{s}")
            g = []
            w = G(f"v_add_u32 v{tA+5}, s{sRS}, v{wb}")
            for p in range(3):
                for e in range(2):
                    w += G(f"ds_read_b64_tr_b16 {ar(fW(b,p)+2*e,2)}, v{tA+5} offset:{2*b*WR + p*2048 + e*512}")
                    g.append(w); w = []
            w = G(op(tA, xb))
            for T in range(8):
                g.append(w + G(f"ds_read_b128 {ar(fX(b,T),4)}, v{tA} offset:{(T>>1)*WR + (T&1)*2048}")); w = []
            g.append(G(op(tA+1, hb) + f"\nds_read_b128 {ar(fX(b,8),4)}, v{tA+1}"))
            for j in range(3): g.append(G(op(tA+2+j, st+j) + f"\nds_read_b128 {ar(fS(b,j),4)}, v{tA+2+j}"))
            return g
        def mfmas(b):
            g = []
            for T in range(9):
                g.append(G(f"v_mfma_f32_16x16x32_bf16 {vr(Q+4*T,4)}, {ar(fW(b,0),4)}, {ar(fX(b,T),4)}, {vr(Q+4*T,4)}"))
                g.append(G(f"v_mfma_f32_16x16x32_bf16 {vr(K+4*T,4)}, {ar(fW(b,1),4)}, {ar(fX(b,T),4)}, {vr(K+4*T,4)}"))
                g.append(G(f"v_mfma_f32_16x16x32_bf16 {vr(V+4*T,4)}, {ar(fX(b,T),4)}, {ar(fW(b,2),4)}, {vr(V+4*T,4)}"))
            for j in range(3):
                g.append(G(f"v_mfma_f32_16x16x32_bf16 {vr(STA+4*j,4)}, {ar(fS(b,j),4)}, {ar(fS(b,j),4)}, {vr(STA+4*j,4)}"))
            return g
        self.loop_head(a, "at")
        dm = self.dma_groups(spec)
        for b, d in ((0, dm[:6]), (1, dm[6:])):
            m = mfmas(1 - b); r = reads(b)
            first = [x for x in m[:18]]
            for i in range(18): first[i] = first[i] + r[i]
            rest = weave(m[18:], d)
            for x in first: a.extend(x)
            a.extend(rest)
            if b == 0: a("s_waitcnt lgkmcnt(0)")
        self.loop_tail(a, "at")
        self.stamp(a, 2)
        m = mfmas(1)
        for x in m[27:] + m[:27]: a.extend(x)
        self.go_load(a)
        t0 = 160
        for j in range(3):
            a(f"v_cndmask_b32 v{STA+4*j}, v{STA+4*j}, v{STA+4*j+1}, s[{sQ}:{sQ+1}]")
        for j in range(3):
            a(f"v_cndmask_b32 v{STA+4*j}, v{STA+4*j}, v{STA+4*j+2}, s[{sQ+2}:{sQ+3}]")
        self.ln_finalize(a, [STA+4*j+3 for j in range(3)], [STA+4*j for j in range(3)], [t0+j for j in range(3)],
                         [STA+4*j+1 for j in range(3)], [t0+3+j for j in range(3)], [STA+4*j+2 for j in range(3)])
        a(f"s_mov_b64 exec, s[{sQ+4}:{sQ+5}]")
        for j in range(3): a(f"ds_write2_b32 v{tbl}, v{STA+4*j+1}, v{STA+4*j+2} offset0:{12*j} offset1:{144+12*j}")
        a("s_mov_b64 exec, -1")
        csq, csk, csv, sA, Vp, sBuf, SP, aA, aB = 156, 160, 164, 166, 184, 204, 204, 120, 121
        for r in range(4):
            a(f"v_mov_b32_dpp v{csq+r}, v{Q+32+r} row_newbcast:0 row_mask:0xf bank_mask:0xf")
            a(f"v_mov_b32_dpp v{csk+r}, v{K+32+r} row_newbcast:0 row_mask:0xf bank_mask:0xf")
        a(f"""
        v_and_b32 v{aA}, 15, v{vLANE}
        v_lshlrev_b32 v{aA}, 2, v{aA}
        ds_bpermute_b32 v{csv}, v{aA}, v{V+32}
        v_add_u32 v{aA}, {XT}, v{aA}
        v_and_b32 v{aB}, 48, v{vLANE}
        v_add_u32 v{aB}, {XT}, v{aB}
        s_waitcnt lgkmcnt(0)
        s_barrier
        """)
        eng = self.w2_engine()
        main = []
        def M(t): main.append(G(t))
        for T in range(9):
            M(f"ds_read_b32 v{sA+2*T}, v{aA} offset:{64*T}\nds_read_b32 v{sA+2*T+1}, v{aA} offset:{576+64*T}")
        def rdB(T): M(f"ds_read_b128 {vr(sBuf+8*(T%4),4)}, v{aB} offset:{64*T}\nds_read_b128 {vr(sBuf+8*(T%4)+4,4)}, v{aB} offset:{576+64*T}")
        for T in range(4): rdB(T)
        for T in range(9):
            s = vr(sA+2*T, 2)
            for h in range(2): M(f"v_pk_fma_f32 {vr(K+4*T+2*h,2)}, {vr(csk+2*h,2)}, {s}, {vr(K+4*T+2*h,2)} op_sel_hi:[1,0,1]")
            if T < 8:
                for h in range(2): M(f"v_pk_fma_f32 {vr(Q+4*T+2*h,2)}, {vr(csq+2*h,2)}, {s}, {vr(Q+4*T+2*h,2)} op_sel_hi:[1,0,1]")
            for h in range(2): M(f"v_pk_mul_f32 {vr(K+4*T+2*h,2)}, {vr(K+4*T+2*h,2)}, {s} op_sel:[0,1] op_sel_hi:[1,1]")
            if T < 8:
                for h in range(2): M(f"v_cvt_pk_bf16_f32 v{Q+4*T+h}, v{Q+4*T+2*h}, v{Q+4*T+2*h+1}")
                M(f"v_mul_f32 v{sA+2*T+1}, {fb(0.25*LOG2E)}, v{sA+2*T+1}")
            for h in range(2): M(f"v_cvt_pk_bf16_f32 v{K+4*T+h}, v{K+4*T+2*h}, v{K+4*T+2*h+1}")
        vp = lambda T: Vp + 10 * (T & 1) + 2 + 2 * (T >> 1) if T < 8 else Vp
        for T in range(9):
            sb = sBuf + 8 * (T % 4)
            for h in range(2): M(f"v_pk_fma_f32 {vr(V+4*T+2*h,2)}, {vr(sb+2*h,2)}, {vr(csv,2)}, {vr(V+4*T+2*h,2)} op_sel_hi:[1,0,1]")
            for h in range(2): M(f"v_pk_mul_f32 {vr(V+4*T+2*h,2)}, {vr(V+4*T+2*h,2)}, {vr(sb+4+2*h,2)}")
            if T + 4 < 9: rdB(T + 4)
            for h in range(2): M(f"v_cvt_pk_bf16_f32 v{vp(T)+h}, v{V+4*T+2*h}, v{V+4*T+2*h+1}")
        M(f"v_mov_b32 v{Vp+10}, v{Vp}\nv_mov_b32 v{Vp+11}, v{Vp+1}")
        for T in range(8):
            prev = T - 2 if T >= 2 else 8
            bias = bP if T >= 2 else (bH0, bH1)[T]
            M(f"v_mfma_f32_16x16x16_bf16 {vr(V+4*T,4)}, {vr(K+4*T,2)}, {vr(Q+4*T,2)}, {vr(bC,4)}")
            M(f"v_mfma_f32_16x16x16_bf16 {vr(SP+4*T,4)}, {vr(K+4*prev,2)}, {vr(Q+4*T,2)}, {vr(bias,4)}")
        mx = lambda T: Q + 4 * T + 2
        for T in range(8):
            for r in range(4): M(f"v_max_f32 v{V+4*T+r}, v{V+4*T+r}, v{SP+4*T+r}")
        for T in range(8): M(f"v_max3_f32 v{mx(T)}, v{V+4*T}, v{V+4*T+1}, v{V+4*T+2}")
        for T in range(8): M(f"v_max_f32 v{mx(T)}, v{mx(T)}, v{V+4*T+3}")
        for sw in ("32", "16"):
            for T in range(8): M(f"v_mov_b32 v{mx(T)+1}, v{mx(T)}")
            for T in range(8): M(f"v_permlane{sw}_swap_b32 v{mx(T)+1}, v{mx(T)}")
            for T in range(8): M(f"v_max_f32 v{mx(T)}, v{mx(T)}, v{mx(T)+1}")
        for T in range(8): M(f"v_mul_f32 v{sA+2*T}, -v{mx(T)}, v{sA+2*T+1}".replace("v_mul_f32", "v_mul_f32_e64"))
        for T in range(8):
            for h in range(2):
                M(f"v_pk_fma_f32 {vr(V+4*T+2*h,2)}, {vr(V+4*T+2*h,2)}, {vr(sA+2*T,2)}, {vr(sA+2*T,2)} op_sel:[0,1,0] op_sel_hi:[1,1,0]")
        for T in range(8):
            for r in range(4): M(f"v_exp_f32 v{V+4*T+r}, v{V+4*T+r}")
        for T in range(8):
            for h in range(2): M(f"v_cvt_pk_bf16_f32 v{V+4*T+h}, v{V+4*T+2*h}, v{V+4*T+2*h+1}")
        for T in range(8):
            for h in range(2): M(f"v_and_b32 v{SP+4*T+h}, v{mP+h}, v{V+4*T+h}")
            for h in range(2): M(f"v_and_b32 v{SP+4*T+2+h}, v{mC+h}, v{V+4*T+h}")
        for T in range(8):
            M(f"v_mfma_f32_16x16x16_bf16 {vr(K+4*T,4)}, {vr(one2,2)}, {vr(V+4*T,2)}, 0")
        for T in range(8):
            M(f"v_mfma_f32_16x16x32_bf16 {vr(Q+4*T,4)}, {vr(vp(T)-2,4)}, {vr(SP+4*T,4)}, 0")
        for T in range(8): M(f"v_rcp_f32 v{K+4*T}, v{K+4*T}")
        for T in range(8):
            for h in range(2): M(f"v_pk_mul_f32 {vr(Q+4*T+2*h,2)}, {vr(Q+4*T+2*h,2)}, {vr(K+4*T,2)} op_sel_hi:[1,0]")
        for T in range(8):
            for h in range(2): M(f"v_cvt_pk_bf16_f32 v{V+2*T+h}, v{Q+4*T+2*h}, v{Q+4*T+2*h+1}")
        for u in range(4):
            for h in range(2): M(f"v_permlane16_swap_b32 v{V+4*u+h}, v{V+4*u+2+h}")
        rest = self.split_weave(a, main, eng, self.o.get("at_in", 24))
        a(f"s_add_u32 s{sT0}, s{sSTO}, {144*2048}")
        for u in range(4):
            a(f"buffer_store_dwordx4 {vr(V+4*u,4)}, v{vL16}, {srd(rWS)}, s{sSTO if u < 2 else sT0} offen offset:{(u&1)*1024} sc1", tag="st")
        self.stamp(a, 3)
        k = self.o.get("at_after", 8)
        for g in rest[:k]: a.extend(g)
        self.publish(a, "at", ["st"])
        self.stamp(a, 4)
        for g in rest[k:]: a.extend(g)
        a("s_waitcnt lgkmcnt(0)\ns_branch L_p2")
        self.switch_block(a, "at")
        self.gospin(a, "at")

    def ffn(self):
        a = self.a
        a.label("L_ffn")
        a.assume(vm=[], lgkm=[])
        ACC, CS, SEL, S1, S2, TL, XF = 0, 112, 140, 144, 146, 148, 152
        xq, wb0, wb1, wbh, tA, vB1, ctw, ctr, ctb = 160, 164, 165, 166, 167, 172, 176, 177, 178
        fW = lambda b, j: 160 + 28 * b + 4 * j
        spec = [(vD, 'A', 0), (vD+1, 'A', 0), (vD, 'A', 0), (vD+1, 'A', 0)] + [(vD+2, 'B', 0)] * 6 + [(vD+3, 'B', 0)]
        self.mk_srd(a, rB, pW1, 512*3584)
        self.mk_srd(a, rB1, pB1, 3584)
        a(f"""
        v_lshlrev_b32 v{vL16}, 4, v{vLANE}
        v_mul_u32_u24 v8, 3584, v2
        v_add_u32 v{vD+2}, v8, v6
        v_lshrrev_b32 v7, 2, v{vLANE}
        v_mul_u32_u24 v7, 3584, v7
        v_and_b32 v8, 3, v{vLANE}
        v_lshl_add_u32 v{vD+3}, v8, 4, v7
        v_mov_b32 v{vD+4}, 0
        s_mov_b32 s{sINCB}, {64*3584}
        s_mul_i32 s{sT0}, s{sW}, {16*3584}
        s_mul_i32 s{sT1}, s{sCG}, 448
        s_add_u32 s{sT0}, s{sT0}, s{sT1}
        s_sub_u32 s{sT0}, s{sT0}, s{sINCB}
        s_bitcmp1_b32 s{sCG}, 0
        s_cselect_b32 s{sT2}, 0, 384
        s_add_u32 s{sOFF+10}, s{sT0}, s{sT2}
        s_bitcmp1_b32 s{sCG}, 0
        s_cselect_b32 s{sT2}, 64, 0
        s_add_u32 s{sT0}, s{sT0}, s{sT2}
        """)
        for i in range(6): a(f"s_add_u32 s{sOFF+4+i}, s{sT0}, {(i >> 1)*128 + (i & 1)*8*3584}")
        a(f"""
        v_lshlrev_b32 v7, 1, v{vGO}
        v_add_u32 v7, s{sT2}, v7
        v_subrev_u32 v8, 448, v7
        v_min_u32 v7, v7, v8
        buffer_load_ushort v{vB1}, v7, {srd(rB1)}, s{sT1} offen
        v_lshlrev_b32 v{ctb}, 5, v{vGO}
        v_add_u32 v{ctb}, {XT+16}, v{ctb}
        """)
        self.first_stages(a, spec)
        a(f"v_mov_b32 v{vONE}, 1")
        self.p2_consts(a)
        self.flag_addr(a, 8)
        a(f"""
        v_and_b32 v10, 31, v{vLANE}
        v_lshrrev_b32 v11, 5, v{vLANE}
        v_bfe_u32 v7, v{vLANE}, 1, 3
        s_lshl_b32 s{sT0}, s{sW}, 1
        v_xor_b32 v7, s{sT0}, v7
        v_xor_b32 v7, v11, v7
        v_lshlrev_b32 v7, 4, v7
        v_lshl_add_u32 v7, v10, 7, v7
        v_add_u32 v{xq}, s{sWB}, v7
        v_xor_b32 v{xq+1}, 32, v{xq}
        v_xor_b32 v{xq+2}, 64, v{xq}
        v_xor_b32 v{xq+3}, 96, v{xq}
        v_bfe_u32 v8, v{vLANE}, 2, 2
        v_bfe_u32 v9, v{vLANE}, 4, 1
        v_and_b32 v12, 3, v{vLANE}
        v_lshlrev_b32 v12, 3, v12
        v_lshl_add_u32 v12, v9, 5, v12
        v_lshl_add_u32 v7, v8, 7, v12
        v_lshl_add_u32 v7, v11, 10, v7
        v_bfe_u32 v13, v{vLANE}, 3, 1
        v_lshl_add_u32 v7, v13, 6, v7
        v_add_u32 v{wb0}, 4096, v7
        v_xor_b32 v{wb1}, 64, v{wb0}
        v_lshl_add_u32 v7, v8, 6, v12
        v_lshl_add_u32 v7, v11, 9, v7
        v_add_u32 v{wbh}, {4096+6144}, v7
        v_bfe_u32 v7, v{vLANE}, 2, 1
        v_cmp_eq_u32 vcc, v7, v9
        v_mov_b32 v8, 0x3f803f80
        v_cndmask_b32 v{SEL}, 0, v8, vcc
        v_mov_b32 v{SEL+1}, v{SEL}
        v_mov_b32 v{SEL+2}, v{SEL}
        v_mov_b32 v{SEL+3}, v{SEL}
        v_lshlrev_b32 v7, 5, v10
        s_lshl_b32 s{sT0}, s{sW}, 2
        s_add_u32 s{sT0}, s{sT0}, {XT}
        v_add_u32 v{ctw}, s{sT0}, v7
        v_lshl_add_u32 v7, v11, 4, v7
        v_add_u32 v{ctr}, {XT}, v7
        s_lshl_b32 s{sT0}, s{sRB}, 1
        s_lshr_b32 s{sT1}, s{sW}, 1
        s_add_u32 s{sT0}, s{sT0}, s{sT1}
        s_mul_i32 s{sT0}, s{sT0}, 144
        s_mul_i32 s{sT1}, s{sCG}, 14
        s_add_u32 s{sT0}, s{sT0}, s{sT1}
        s_add_u32 s{sT0}, s{sT0}, 32
        s_lshl_b32 s{sT0}, s{sT0}, 1
        s_and_b32 s{sT1}, s{sW}, 1
        s_add_u32 s{sT0}, s{sT0}, s{sT1}
        s_lshl_b32 s{sT0}, s{sT0}, 10
        s_bitcmp1_b32 s{sCG}, 0
        s_cselect_b32 s{sT1}, 4096, 0
        s_cselect_b32 s{sT2}, 0, {6*4096}
        s_add_u32 s{sSTO}, s{sT0}, s{sT1}
        s_add_u32 s{sSTO6}, s{sT0}, s{sT2}
        """)
        for q in range(4): a(f"s_xor_b32 s{sT0}, s{sW}, {q}\ns_mul_i32 s{sQ+q}, s{sT0}, {WR}")
        for r in list(range(140)) + [144, 145, 146, 147, 156, 157, 158, 159, vB1+1, vB1+2, vB1+3]: a(f"v_mov_b32 v{r}, 0")
        for r in range(28): a(f"v_accvgpr_write_b32 a{fW(1,0)+r}, 0")
        self.stamp(a, 1)

        def reads(q):
            b = q & 1
            g = [G(f"v_add_u32 v{tA}, s{sRS}, v{xq+q}\ns_add_u32 s{sT0}, s{sRS}, s{sQ+q}\nds_read_b128 {vr(XF+4*b,4)}, v{tA}")]
            for j in range(7):
                w = []
                if j < 2: w = G(f"v_add_u32 v{tA+1+j}, s{sT0}, v{wb0+j}")
                if j == 2: w = G(f"v_add_u32 v{tA+3}, s{sT0}, v{wbh}")
                for e in range(2):
                    if j < 6: w += G(f"ds_read_b64_tr_b16 {ar(fW(b,j)+2*e,2)}, v{tA+1+(j&1)} offset:{(j>>1)*2048 + e*512}")
                    else: w += G(f"ds_read_b64_tr_b16 {ar(fW(b,j)+2*e,2)}, v{tA+3} offset:{e*256}")
                g.append(w)
            return g
        def mfmas(q):
            b = q & 1; g = []
            for j in range(7):
                g.append(G(f"v_mfma_f32_32x32x16_bf16 {vr(ACC+16*j,16)}, {ar(fW(b,j),4)}, {vr(XF+4*b,4)}, {vr(ACC+16*j,16)}"))
            if q == 0:
                for j in range(7):
                    g.append(G(f"v_mfma_f32_16x16x32_bf16 {vr(CS+4*j,4)}, {vr(SEL,4)}, {ar(fW(b,j),4)}, {vr(CS+4*j,4)}"))
            return g
        def stats(q):
            b = q & 1; g = []
            for d in range(4):
                t = TL + 2 * (d & 1)
                g.append(G(f"v_lshlrev_b32 v{t}, 16, v{XF+4*b+d}\nv_and_b32 v{t+1}, 0xffff0000, v{XF+4*b+d}"))
                g.append(G(f"v_add_f32 v{S1}, v{S1}, v{t}\nv_add_f32 v{S1+1}, v{S1+1}, v{t+1}"))
                g.append(G(f"v_fmac_f32 v{S2}, v{t}, v{t}\nv_fmac_f32 v{S2+1}, v{t+1}, v{t+1}"))
            return g
        self.loop_head(a, "ff")
        dm = self.dma_groups(spec)
        dsplit = (dm[0:2], dm[2:7], dm[7:9], dm[9:11])
        for q in range(4):
            qm = (q + 3) & 3
            m = mfmas(qm); r = reads(q)
            for i in range(4): m[i] = m[i] + r[2*i] + r[2*i+1]
            fill = stats(qm) + dsplit[q]
            a.extend(weave(m, fill, start=3))
        self.loop_tail(a, "ff")
        self.stamp(a, 2)
        a.extend(weave(mfmas(3), stats(3)))
        self.go_load(a)
        nm, sb, rs, t, CC, BV = 148, 150, 149, 151, 152, 156
        a(f"""
        v_add_f32 v{S1}, v{S1}, v{S1+1}
        v_add_f32 v{S2}, v{S2}, v{S2+1}
        v_mov_b32 v{S1+1}, v{S1}
        v_mov_b32 v{S2+1}, v{S2}
        s_mov_b32 s{sT0}, 0x07060302
        """)
        for j in range(7): a(f"v_and_b32 v{CS+4*j+1}, 0xffff0000, v{CS+4*j}")
        a(f"v_permlane32_swap_b32 v{S1+1}, v{S1}\nv_permlane32_swap_b32 v{S2+1}, v{S2}")
        for j in range(7): a(f"v_sub_f32 v{CS+4*j+1}, v{CS+4*j}, v{CS+4*j+1}")
        for j in range(7): a(f"v_perm_b32 v{CS+4*j}, v{CS+4*j+1}, v{CS+4*j}, s{sT0}")
        for j in range(7): a(f"ds_write_b32 v{ctw}, v{CS+4*j} offset:{1024*j}")
        a(f"ds_write_b128 v{ctb}, {vr(vB1,4)}")
        a(f"v_add_f32 v{S1}, v{S1}, v{S1+1}\nv_add_f32 v{S2}, v{S2}, v{S2+1}")
        self.ln_finalize(a, [S1], [S2], [t], [nm], [sb], [rs])
        a("s_waitcnt lgkmcnt(0)\ns_barrier")
        for j in range(7): a(f"ds_read_b128 {ar(fW(0,j),4)}, v{ctr} offset:{1024*j}")
        a(f"""
        v_cmp_gt_u32 vcc, 32, v{vLANE}
        v_lshrrev_b32 v{t}, 16, v{nm}
        v_or_b32 v{t}, v{t}, v{nm}
        v_lshrrev_b32 v{BV}, 16, v{sb}
        v_cndmask_b32 v{BV}, v{BV}, v{t}, vcc
        v_cndmask_b32 v{BV+1}, 0, v{t}, vcc
        v_mov_b32 v{BV+2}, v{BV+1}
        v_mov_b32 v{BV+3}, v{BV+1}
        v_mul_f32 v{CC+1}, {fb(GC0)}, v{rs}
        v_mul_f32 v{t}, v{rs}, v{rs}
        v_mul_f32 v{CC}, {fb(0.044715)}, v{CC+1}
        v_mul_f32 v{CC}, v{CC}, v{t}
        """)
        eng = self.w2_engine()
        pre = [G(f"v_mfma_f32_32x32x16_bf16 {vr(ACC+16*j,16)}, {ar(fW(0,j),4)}, {vr(BV,4)}, {vr(ACC+16*j,16)}") for j in range(7)]
        eng = self.split_weave(a, pre, eng, 3)
        main = []
        def M(t, tag=None): main.append(G(t, tag))
        Z, O = 112, 128
        for j in range(7):
            for q2 in range(2):
                x0 = ACC + 16 * j + 8 * q2; z = Z + 8 * q2; o = O + 4 * ((2 * j + q2) % 3)
                P = range(0, 8, 2)
                for p in P: M(f"v_pk_mul_f32 {vr(z+p,2)}, {vr(x0+p,2)}, {vr(x0+p,2)}")
                for p in P: M(f"v_pk_fma_f32 {vr(z+p,2)}, {vr(z+p,2)}, {vr(CC,2)}, {vr(CC,2)} op_sel:[0,0,1] op_sel_hi:[1,0,1]")
                for p in P: M(f"v_pk_mul_f32 {vr(z+p,2)}, {vr(z+p,2)}, {vr(x0+p,2)}")
                for p in range(8): M(f"v_exp_f32 v{z+p}, v{z+p}")
                for p in P: M(f"v_pk_fma_f32 {vr(z+p,2)}, {vr(z+p,2)}, {vr(sb,2)}, {vr(sb,2)} op_sel_hi:[1,0,0]")
                for p in range(8): M(f"v_rcp_f32 v{z+p}, v{z+p}")
                for p in P: M(f"v_pk_mul_f32 {vr(z+p,2)}, {vr(z+p,2)}, {vr(x0+p,2)}")
                for p in P: M(f"v_cvt_pk_bf16_f32 v{o+p//2}, v{z+p}, v{z+p+1}")
                if j < 6:
                    if q2 == 0: M(f"s_add_u32 s{sT2}, s{sSTO}, {4096*j}")
                    M(f"buffer_store_dwordx4 {vr(o,4)}, v{vL16}, {srd(rWS)}, s{sT2} offen offset:{2048*q2} sc1", "st")
                else:
                    M(f"buffer_store_dwordx4 {vr(o,4)}, v{vL16}, {srd(rWS)}, s{sSTO6} offen offset:{2048*q2} sc1", "st")
        rest = self.split_weave(a, main, eng, self.o.get("ff_in", 30))
        self.stamp(a, 3)
        k = self.o.get("ff_after", 8)
        for g in rest[:k]: a.extend(g)
        self.publish(a, "ff", ["st"])
        self.stamp(a, 4)
        for g in rest[k:]: a.extend(g)
        a("s_waitcnt lgkmcnt(0)")

    def phase2(self):
        a = self.a
        a.label("L_p2")
        a.assume(vm=[], lgkm=[])
        AS, AY, WT, XR, BR, XU, vA, vXO, vF, vR, PT = 0, 64, 128, 144, 152, 160, 176, 178, 180, 182, 192
        sAB, sMK, sXO, sFL = sQ, sQ + 1, sQ + 2, sQ + 3
        a(f"""
        s_lshr_b32 s{sT0}, s{sW}, 1
        s_lshl_b32 s{sT1}, s{sT0}, 10
        v_add_u32 v{vA}, s{sT1}, v{vL16}
        v_xor_b32 v{vA+1}, 0x400, v{vA}
        s_lshl_b32 s{sXO}, s{sMT}, 1
        s_add_u32 s{sXO}, s{sXO}, s{sT0}
        s_lshl_b32 s{sXO}, s{sXO}, 15
        s_lshl_b32 s{sT1}, s{sNT}, 1
        s_and_b32 s{sT0}, s{sW}, 1
        s_add_u32 s{sT1}, s{sT1}, s{sT0}
        s_lshl_b32 s{sT1}, s{sT1}, 6
        s_add_u32 s{sXO}, s{sXO}, s{sT1}
        v_and_b32 v{vF}, 15, v{vLANE}
        v_bfe_u32 v{vXO}, v{vLANE}, 4, 1
        v_lshl_add_u32 v{vXO}, v{vF}, 1, v{vXO}
        v_lshlrev_b32 v{vXO}, 10, v{vXO}
        v_lshrrev_b32 v{vR}, 5, v{vLANE}
        v_lshlrev_b32 v{vR}, 3, v{vR}
        v_add_u32 v{vXO}, v{vXO}, v{vR}
        v_add_u32 v{vXO+1}, v{vXO}, v{vR}
        """)
        for i in range(4): a(f"buffer_load_dwordx2 {vr(BR+2*i,2)}, v{vR}, {srd(rB2)}, s{sT1} offen offset:{16*i}")
        for i in range(4): a(f"buffer_load_dwordx2 {vr(XR+2*i,2)}, v{vXO}, {srd(rX2)}, s{sXO} offen offset:{16*i}")
        a(f"""
        v_lshlrev_b32 v{vF+1}, 2, v{vF}
        s_lshr_b32 s{sFL}, s{sMT}, 1
        s_lshl_b32 s{sFL}, s{sFL}, 2
        s_add_u32 s{sFL}, s{sFL}, s{sW}
        s_lshl_b32 s{sFL}, s{sFL}, 7
        s_add_u32 s{sFL}, s{sFL}, {WS_FLAGS}
        s_bitcmp1_b32 s{sMT}, 0
        s_cselect_b32 s{sMK}, 0xccff, 0x33ff
        s_mul_i32 s{sAB}, s{sMT}, {144*2048}
        s_mov_b32 s{sT1}, 0
        L_poll:
        buffer_load_dword v{vF}, v{vF+1}, {srd(rWS)}, s{sFL} offen sc1
        s_add_u32 s{sT1}, s{sT1}, 1
        s_waitcnt vmcnt(0)
        v_cmp_eq_u32 vcc, 1, v{vF}
        s_cmp_ge_u32 s{sT1}, 0x100000
        s_cbranch_scc1 L_ready
        s_and_b32 s{sT0}, vcc_lo, s{sMK}
        s_cmp_lg_u32 s{sT0}, s{sMK}
        s_cbranch_scc1 L_poll
        L_ready:
        """.replace("s_cselect_b32 s%d, 0xccff, 0x33ff" % sMK, f"s_movk_i32 s{sMK}, 0x33ff\ns_cselect_b32 s{sMK}, 0xccff, s{sMK}"))
        self.stamp(a, 5)
        a(f"""
        s_lshl_b32 s{sT0}, s{sW}, 14
        s_add_u32 s{sT0}, s{sT0}, s{sAB}
        s_mul_i32 s{sT1}, s{sW}, {28*2048}
        s_add_u32 s{sAB}, s{sAB}, s{sT1}
        s_add_u32 s{sAB}, s{sAB}, {32*2048}
        """)
        order = [('s', k) for k in range(8)] + [('y', k) for k in range(20, 28)] + [('y', k) for k in range(20)]
        NB = 12
        stg = lambda n, b: 160 + 8 * (n % NB) + 4 * b
        def loads(n):
            kind, k = order[n]; g = []
            if k % 2 == 0: g += G(f"s_add_u32 s{sT2}, s{sT0 if kind=='s' else sAB}, {k*2048}")
            for b in range(2):
                g += G(f"buffer_load_dwordx4 {ar(stg(n,b),4)}, v{vA+b}, {srd(rWS)}, s{sT2} offen offset:{(k&1)*2048} sc1")
            return g
        def wreads(n):
            kind, k = order[n]
            c0 = 40 + 2 * k if kind == 's' else 2 * k + 16
            return [G(self.tr_read(vr(WT + 8 * (n & 1) + 4 * h + 2 * e, 2), c0 + e, h), tag=f"w{n}") for h in range(2) for e in range(2)]
        for n in range(NB): a.extend(loads(n))
        for g in wreads(0): a.extend(g)
        for i in range(8):
            a(f"v_lshlrev_b32 v{AY+2*i}, 16, v{BR+i}\nv_and_b32 v{AY+2*i+1}, 0xffff0000, v{BR+i}")
            a(f"v_lshlrev_b32 v{XU+2*i}, 16, v{XR+i}\nv_and_b32 v{XU+2*i+1}, 0xffff0000, v{XR+i}")
        a(f"v_add_u32 v{vR}, s{sWB}, v{vL16}\nv_add_u32 v{vR+1}, {2*SL}, v{vR}")
        for j in range(1, 4):
            a(f"s_xor_b32 s{sT1}, s{sW}, {j}\ns_mul_i32 s{sT1}, s{sT1}, {WR}\nv_add_u32 v{vR+2*j}, s{sT1}, v{vL16}\nv_add_u32 v{vR+2*j+1}, {2*SL}, v{vR+2*j}")
        def lds_at(base, c):
            off = self.chunk_lds(c)
            return (base + 1, off - 2 * SL) if off >= 2 * SL else (base, off)
        def part_write(acc, c0, after):
            g = []
            for j in range(1, 4):
                for i in range(4):
                    r, off = lds_at(vR, c0 + 4 * (j - 1) + i)
                    g.append(G(f"ds_write_b128 v{r}, {vr(acc+16*j+4*i,4)} offset:{off}", after=after))
            return g
        swr = part_write(AS, 40, ["w7"])
        for n, (kind, k) in enumerate(order):
            acc = AS if kind == 's' else AY
            m = []
            for b in range(2):
                for h in range(2):
                    d = vr(acc + 16 * (h + 2 * b), 16)
                    wf = vr(WT + 8 * (n & 1) + 4 * h, 4) if n < 16 else ar(8 * k + 4 * h, 4)
                    c = "0" if (n == 0 or (n == 8 and h + b > 0)) else d
                    m.append(G(f"v_mfma_f32_32x32x16_bf16 {d}, {wf}, {ar(stg(n,b),4)}, {c}"))
            if n + 1 < 16:
                w = wreads(n + 1)
                m[0] += w[0] + w[1]; m[1] += w[2] + w[3]
            if 18 <= n < 30: m[1] += swr[n - 18]
            if n + NB < len(order): m[3] += loads(n + NB)
            for x in m: a.extend(x)
        self.stamp(a, 6)
        for g in part_write(AY, 56, []): a.extend(g)
        a("s_waitcnt lgkmcnt(0)\ns_barrier")
        def part_read(dst, c0, j):
            for i in range(4):
                r, off = lds_at(vR + 2 * j, c0 + 4 * (j - 1) + i)
                a(f"ds_read_b128 {vr(dst+4*i,4)}, v{r} offset:{off}")
        for j in range(1, 4): part_read(AY + 16 * j, 56, j)
        for j in range(1, 4): part_read(AS + 16 * j, 40, j)
        P = range(0, 16, 2)
        for j in range(1, 4):
            for p in P: a(f"v_pk_add_f32 {vr(AY+p,2)}, {vr(AY+p,2)}, {vr(AY+16*j+p,2)}")
        a(f"v_mov_b32 v{vF}, {fb(-LOG2E)}")
        for p in P: a(f"v_pk_mul_f32 {vr(PT+p,2)}, {vr(AY+p,2)}, {vr(vF,2)} op_sel_hi:[1,0]")
        for p in range(16): a(f"v_exp_f32 v{PT+p}, v{PT+p}")
        for p in P: a(f"v_pk_add_f32 {vr(PT+p,2)}, {vr(PT+p,2)}, 1.0 op_sel_hi:[1,0]")
        for p in range(16): a(f"v_rcp_f32 v{PT+p}, v{PT+p}")
        for j in range(1, 4):
            for p in P: a(f"v_pk_add_f32 {vr(AS+p,2)}, {vr(AS+p,2)}, {vr(AS+16*j+p,2)}")
        for p in P: a(f"v_pk_mul_f32 {vr(PT+p,2)}, {vr(PT+p,2)}, {vr(AY+p,2)}")
        for p in P: a(f"v_pk_fma_f32 {vr(PT+p,2)}, {vr(PT+p,2)}, {vr(AS+p,2)}, {vr(XU+p,2)}")
        for p in P: a(f"v_cvt_pk_bf16_f32 v{XR+p//2}, v{PT+p}, v{PT+p+1}")
        for h in range(2):
            a(f"v_permlane32_swap_b32 v{XR+4*h}, v{XR+4*h+2}\nv_permlane32_swap_b32 v{XR+4*h+1}, v{XR+4*h+3}")
        for h in range(2):
            a(f"buffer_store_dwordx4 {vr(XR+4*h,4)}, v{vXO+1}, {srd(rOUT)}, s{sXO} offen offset:{32*h}")
        if self.stamps:
            a("s_waitcnt vmcnt(0)")
            self.stamp(a, 7)
            a(f"""
            s_lshl_b32 s{sT0}, s2, 2
            s_add_u32 s{sT0}, s{sT0}, s{sW}
            s_lshl_b32 s{sT0}, s{sT0}, 6
            s_add_u32 s{sT0}, s{sT0}, {WS_STAMPS}
            s_mov_b64 exec, 0xffff
            buffer_store_dword v{vSTAMP}, v{vF+1}, {srd(rWS)}, s{sT0} offen
            """)
        if "dk1" in self.o:
            a(f"""
            s_cmp_lg_u32 s2, {self.o.get("dwg", 0)}
            s_cbranch_scc1 L_end
            v_readlane_b32 s{sT0}, v{vSTAMP}, {self.o.get("dk0", 0)}
            v_readlane_b32 s{sT1}, v{vSTAMP}, {self.o["dk1"]}
            v_readlane_b32 s{sT2}, v{vSTAMP}, 7
            s_nop 3
            s_sub_u32 s{sT0}, s{sT1}, s{sT0}
            s_min_u32 s{sT0}, s{sT0}, 10000
            s_mul_i32 s{sT0}, s{sT0}, 10
            L_diag:
            s_memrealtime s[{sCLK}:{sCLK+1}]
            s_waitcnt lgkmcnt(0)
            s_sub_u32 s{sT1}, s{sCLK}, s{sT2}
            s_cmp_lt_u32 s{sT1}, s{sT0}
            s_cbranch_scc1 L_diag
            """)
        a("L_end:\ns_endpgm")
        self.switch_block(a, "ff")
        self.gospin(a, "ff")

    def build(self):
        self.prologue(); self.attention(); self.ffn(); self.phase2()
        body = self.a.finalize()
        head = open("cdna_kernels/" + NAME[:-7] + ".s.ref").read().split("; Override launch")[0]
        return (head + "; @launch grid=(256,1,1) block=(256,1,1) lds=163840\n"
                f'.amdgcn_target "amdgcn-amd-amdhsa--gfx950"\n.text\n.globl {NAME}\n.p2align 8\n.type {NAME},@function\n{NAME}:\n'
                + body +
                f'''.section .rodata,"a"
.p2align 6
.amdhsa_kernel {NAME}
  .amdhsa_next_free_vgpr 512
  .amdhsa_next_free_sgpr 102
  .amdhsa_accum_offset 256
  .amdhsa_group_segment_fixed_size 0
  .amdhsa_kernarg_size 88
  .amdhsa_user_sgpr_count 2
  .amdhsa_user_sgpr_kernarg_segment_ptr 1
  .amdhsa_system_sgpr_workgroup_id_x 1
.end_amdhsa_kernel
''')

if __name__ == "__main__":
    import argparse
    p = argparse.ArgumentParser()
    p.add_argument("out"); p.add_argument("--stamps", action="store_true"); p.add_argument("--p1map", type=int, default=0)
    p.add_argument("-o", action="append", default=[])
    x = p.parse_args()
    opts = {k: int(v) for k, v in (s.split("=") for s in x.o)}
    open(x.out, "w").write(Gen(x.stamps, x.p1map, opts).build())
```

```python
import re

REG = re.compile(r'(?<![\w.])([vas])(?:(\d+)|\[(\d+):(\d+)\])(?![\w])')
TRANS = ('v_exp_f32', 'v_log_f32', 'v_rcp_f32', 'v_rsq_f32', 'v_sqrt_f32', 'v_sin_f32', 'v_cos_f32')
NODST_S = ('s_cmp', 's_cbranch', 's_waitcnt', 's_barrier', 's_nop', 's_branch', 's_bitcmp', 's_setprio', 's_sleep', 's_endpgm')

def regs_of(op):
    out = []
    for m in REG.finditer(op):
        k = m.group(1)
        if m.group(2) is not None: out.append((k, int(m.group(2))))
        else: out += [(k, i) for i in range(int(m.group(3)), int(m.group(4)) + 1)]
    for name in ('vcc', 'exec', 'm0'):
        if re.search(r'(?<![\w])' + name + r'(?![\w])', op): out.append((name, 0))
    return out

class Ins:
    def __init__(self, text, tag=None, after=()):
        self.text = text.strip(); self.tag = tag; self.after = tuple(after)
        t = self.text.split(None, 1)
        self.mn = t[0]
        ops = [o.strip() for o in re.split(r',(?![^\[]*\])', t[1])] if len(t) > 1 else []
        self.ops = ops
        mn = self.mn
        self.mfma = mn.startswith('v_mfma')
        self.valu = mn.startswith('v_') and not self.mfma
        self.salu = mn.startswith('s_') and not mn.startswith(('s_load', 's_mem'))
        self.smem = mn.startswith(('s_load', 's_mem'))
        self.ds = mn.startswith('ds_')
        self.vm = mn.startswith(('buffer_', 'global_'))
        self.dma = self.vm and re.search(r'\blds\b', self.text) is not None
        self.trans = mn.replace('_e32', '').replace('_e64', '') in TRANS
        self.dpp = '_dpp' in mn
        self.perml = mn.startswith('v_permlane')
        R = [regs_of(o) for o in ops]
        flat = lambda l: [x for r in l for x in r]
        self.srcA = self.srcB = self.srcC = []
        if self.mfma:
            self.w = R[0]; self.srcA, self.srcB, self.srcC = R[1], R[2], R[3]; self.r = flat(R[1:])
            self.passes = 8 if '32x32' in mn else 4
        elif self.perml: self.w = flat(R); self.r = flat(R)
        elif self.valu:
            self.w = list(R[0]); self.r = flat(R[1:])
            if mn.startswith(('v_fmac', 'v_dot2c')) or self.dpp: self.r += R[0]
            if mn.startswith(('v_add_co', 'v_sub_co', 'v_addc_co')): self.w += R[1]; self.r = flat(R[2:])
        elif self.ds:
            if mn.startswith(('ds_read', 'ds_bpermute', 'ds_swizzle')): self.w = R[0]; self.r = flat(R[1:])
            else: self.w = []; self.r = flat(R)
        elif self.vm:
            if 'load' in mn and not self.dma: self.w = R[0]; self.r = flat(R[1:])
            else: self.w = []; self.r = flat(R)
            if self.dma: self.r = self.r + [('m0', 0)]
        elif mn.startswith(NODST_S): self.w = []; self.r = flat(R)
        else:
            self.w = list(R[0]) if R else []; self.r = flat(R[1:])
            if 'saveexec' in mn: self.w.append(('exec', 0))
        self.wide_store = self.vm and 'store' in mn and ('x4' in mn or 'x3' in mn)
        self.states = int(ops[0], 0) + 1 if mn == 's_nop' else 1
    def cost(self):
        if self.mfma: return 8
        if self.trans or self.perml: return 8
        return 4 * self.states

def need_states(p, c):
    n = 0
    pw, cr, cw = set(p.w), set(c.r), set(c.w)
    vec = lambda s: {x for x in s if x[0] in 'va' and len(x[0]) == 1}
    sca = lambda s: {x for x in s if x[0] in ('s', 'vcc')}
    if p.valu:
        if c.mfma and vec(pw) & cr: n = max(n, 2)
        if (c.perml or c.dpp) and vec(pw) & cr: n = max(n, 2)
        if c.mn.startswith(('v_readfirstlane', 'v_readlane')) and vec(pw) & cr: n = max(n, 1)
        if p.trans and c.valu and vec(pw) & cr: n = max(n, 1)
        if p.mn.startswith('v_dot') and vec(pw) & (cr | cw) and not (c.mn == p.mn and not vec(pw) & set(regs_of(c.ops[1]) + regs_of(c.ops[2]))): n = max(n, 3)
        if c.valu and sca(pw) & cr: n = max(n, 2)
        if c.vm and sca(pw) & cr: n = max(n, 5)
        if c.salu and sca(pw) & cr: n = max(n, 2)
    if p.mfma:
        big = 12 if p.passes == 8 else 8
        if c.mfma:
            if pw & (set(c.srcA) | set(c.srcB)): n = max(n, big)
            if pw & set(c.srcC):
                if not (p.w == c.srcC and p.passes == c.passes): n = max(n, big - 2)
            elif pw & cw and p.passes != c.passes: n = max(n, big)
        elif (c.valu or c.vm or c.ds) and pw & (cr | cw): n = max(n, big)
        if c.valu and set(p.srcC) & cw: n = max(n, 7 if p.passes == 8 else 3)
    if p.salu and ('m0', 0) in pw and c.dma: n = max(n, 1)
    if p.wide_store and (c.valu or c.mfma) and vec(set(p.r)) & cw: n = max(n, 2)
    return n

class Asm:
    def __init__(self): self.items = []
    def __call__(self, text, tag=None, after=()):
        for line in text.strip().split('\n'):
            line = line.split(';')[0].strip()
            if not line: continue
            if line.endswith(':') or line.startswith('.'): self.items.append(line)
            else: self.items.append(Ins(line, tag, after))
        return self
    def label(self, name): self.items.append(name + ':')
    def comment(self, text): self.items.append('; ' + text)
    def extend(self, other): self.items.extend(other.items if isinstance(other, Asm) else other)
    def wait(self, *tags): self.items.append(('wait', tags))
    def assume(self, vm=None, lgkm=None): self.items.append(('assume', vm, lgkm))
    def save(self, name): self.items.append(('save', name))
    def restore(self, name): self.items.append(('restore', name))

    def finalize(self):
        out = []
        vmq, lgq = [], []
        saved = {}
        def emit_wait(nv, nl):
            parts = []
            if nv is not None: nv = min(nv, 62); parts.append(f'vmcnt({nv})'); del vmq[:max(0, len(vmq) - nv)]
            if nl is not None: nl = min(nl, 14); parts.append(f'lgkmcnt({nl})'); del lgq[:max(0, len(lgq) - nl)]
            if parts: out.append(Ins('s_waitcnt ' + ' '.join(parts)))
        def need(q, pred):
            for i in range(len(q) - 1, -1, -1):
                if pred(q[i]): return len(q) - 1 - i
            return None
        def lg_need(pred):
            n = need(lgq, pred)
            if n is not None and any(e[2] for e in lgq): n = 0
            return n
        for it in self.items:
            if isinstance(it, str): out.append(it); continue
            if isinstance(it, tuple):
                if it[0] == 'wait':
                    tags = set(it[1])
                    emit_wait(need(vmq, lambda e: e[0] in tags), lg_need(lambda e: e[0] in tags))
                elif it[0] == 'save': saved[it[1]] = (list(vmq), list(lgq))
                elif it[0] == 'restore': vmq[:], lgq[:] = saved[it[1]]
                else:
                    if it[1] is not None: vmq[:] = [(t, set(), False) for t in it[1]]
                    if it[2] is not None: lgq[:] = [(t, set(), False) for t in it[2]]
                continue
            touched = set(it.r) | set(it.w); tags = set(it.after)
            pred = lambda e: bool(e[1] & touched) or e[0] in tags
            emit_wait(need(vmq, pred), lg_need(pred))
            if it.tag == 'untracked': out.append(it); continue
            if it.mn == 's_waitcnt':
                m = re.search(r'vmcnt\((\d+)\)', it.text)
                if m: del vmq[:max(0, len(vmq) - int(m.group(1)))]
                m = re.search(r'lgkmcnt\((\d+)\)', it.text)
                if m: del lgq[:max(0, len(lgq) - int(m.group(1)))]
            out.append(it)
            if it.vm:
                vmq.append((it.tag, set(it.w), False))
                assert len(vmq) <= 62, 'vmcnt overflow at ' + it.text
            if it.ds: lgq.append((it.tag, set(it.w), False))
            if it.smem: lgq.append((it.tag, set(it.w), True))
        res = []
        for it in out:
            if isinstance(it, Ins):
                pad = pad_needed(res, it)
                if pad: res.append(Ins(f's_nop {pad - 1}'))
            res.append(it)
        self.final = res
        self.check_branches()
        return '\n'.join(('    ' + i.text) if isinstance(i, Ins) else i for i in res) + '\n'

    def check_branches(self):
        f = self.final
        labels = {x[:-1]: i for i, x in enumerate(f) if isinstance(x, str) and x.endswith(':')}
        for i, it in enumerate(f):
            if isinstance(it, Ins) and it.mn.startswith(('s_cbranch', 's_branch')):
                seq = [x for x in f[max(0, i - 40):i + 1]]
                cnt = 0
                for x in f[labels[it.ops[0]]:]:
                    if not isinstance(x, Ins): continue
                    p = pad_needed(seq, x)
                    assert p == 0, f'hazard across branch {it.text}: {x.text} needs {p}'
                    seq.append(x); cnt += x.states
                    if cnt > 20 or x.mn in ('s_branch', 's_endpgm'): break

def pad_needed(prev, c):
    dist = 0; pad = 0
    for p in reversed(prev):
        if not isinstance(p, Ins): continue
        n = need_states(p, c)
        if n > dist: pad = max(pad, n - dist)
        dist += p.states
        if dist >= 20: break
    return pad

def weave(main, fill, start=0, end=None):
    end = len(main) if end is None else end
    out = []; n = end - start; k = 0
    for i, g in enumerate(main):
        out.extend(g)
        if start <= i < end:
            want = ((i - start + 1) * len(fill) + n - 1) // n
            while k < want: out.extend(fill[k]); k += 1
    while k < len(fill): out.extend(fill[k]); k += 1
    return out

def G(text, tag=None, after=()):
    a = Asm(); a(text, tag, after); return a.items

def ncost(items):
    return sum(i.cost() for i in items if isinstance(i, Ins))

def pack(mfmas, fill, last_free=0):
    cap = []
    for g in mfmas:
        c = 0
        for i in g:
            if isinstance(i, Ins): c += (4 * i.passes - 8) if i.mfma else -i.cost()
        cap.append(max(c, 0))
    for j in range(last_free): cap[-1 - j] = 0
    tot_cap = sum(cap); tot = sum(ncost(f) for f in fill)
    out = []; k = 0; used = 0; acc = 0
    for g, c in zip(mfmas, cap):
        out.extend(g); acc += c
        while k < len(fill) and c > 0 and (used + ncost(fill[k]) / 2) * tot_cap <= acc * tot:
            out.extend(fill[k]); used += ncost(fill[k]); k += 1
    while k < len(fill): out.extend(fill[k]); k += 1
    return out

def merge(*lists):
    items = []
    for li, l in enumerate(lists):
        for i, g in enumerate(l): items.append(((i + 0.5) / len(l), li, g))
    items.sort(key=lambda t: (t[0], t[1]))
    return [g for _, _, g in items]

import subprocess, tempfile, os
def sizes(lines):
    src = '.amdgcn_target "amdgcn-amd-amdhsa--gfx950"\n.text\n' + '\n'.join(lines) + '\n'
    r = subprocess.run(['llvm-mc', '-triple=amdgcn-amd-amdhsa', '-mcpu=gfx950', '-show-encoding'], input=src, capture_output=True, text=True)
    assert r.returncode == 0, r.stderr[:2000]
    return [len(m.group(1).split(',')) for m in re.finditer(r'encoding: \[([^\]]*)\]', r.stdout)]

def align8(text):
    lines = text.split('\n')
    idx = [i for i, l in enumerate(lines) if l.startswith('    ')]
    sz = sizes([l for l in lines if l.strip() and not l.startswith(';')])
    assert len(sz) == len(idx)
    ok = lambda l: re.match(r'\s+v_(mov_b32|add_f32|sub_f32|mul_f32|max_f32|add_u32|and_b32|or_b32|xor_b32|lshlrev_b32|lshrrev_b32|exp_f32|rcp_f32|fmac_f32|not_b32|sqrt_f32) ', l)
    pos = 0; cand = None; prev_line = -1
    for n, i in enumerate(idx):
        for l in lines[prev_line + 1:i]:
            m = re.match(r'\.p2align (\d+)', l)
            if m: al = 1 << int(m.group(1)); pos = (pos + al - 1) // al * al; cand = None
        prev_line = i
        if sz[n] == 8 and pos % 8 == 4 and cand is not None and n + 1 < len(idx) and sz[n + 1] == 8:
            lines[cand] = re.sub(r'(v_\w+) ', r'\1_e64 ', lines[cand], count=1); pos += 4; cand = None
        if sz[n] == 4 and ok(lines[i]): cand = i
        elif sz[n] == 8 and pos % 8 == 0: cand = None
        pos += sz[n]
    return '\n'.join(lines)

def conflicts(x, y):
    xr, xw, yr, yw = set(x.r), set(x.w), set(y.r), set(y.w)
    return bool(xw & (yr | yw)) or bool(xr & yw)

def mem_first(groups):
    def cls(g):
        ins = [i for i in g if isinstance(i, Ins)]
        if any(i.ds or i.vm for i in ins): return 0
        if all(not i.valu for i in ins): return 1
        return 2
    out = []
    for g in groups:
        c = cls(g); p = len(out)
        while p > 0 and cls(out[p - 1]) > c and all(isinstance(x, Ins) for x in out[p - 1] + g) and not any(conflicts(x, y) for x in out[p - 1] for y in g if isinstance(x, Ins) and isinstance(y, Ins)):
            p -= 1
        out.insert(p, g)
    return out

def pack(mfmas, fill, last_free=0, full=False):
    cap = []
    for g in mfmas:
        c = 0
        for i in g:
            if isinstance(i, Ins): c += (4 * i.passes - 8) if i.mfma else -i.cost()
        cap.append(max(c, 0))
    for j in range(last_free): cap[-1 - j] = 0
    fill = [f for f in fill if f]
    tot_cap = sum(cap); tot = sum(ncost(f) for f in fill)
    if full: tot = max(tot, tot_cap)
    out = []; k = 0; used = 0; acc = 0
    for n, (g, c) in enumerate(zip(mfmas, cap)):
        out.extend(g); acc += c; gap = []
        while k < len(fill) and ((c > 0 and (used + ncost(fill[k]) / 2) * tot_cap <= acc * tot) or n == len(mfmas) - 1):
            gap.append(fill[k]); used += ncost(fill[k]); k += 1
        for x in mem_first(gap): out.extend(x)
    return out
```

```python
import sys, struct
from asmlib import *

NAME = "recurrent_scan__sliding_local_dilated__dense_activation_gelu__prompt_kernel"
SL, WR, XT = 45056, 11264, 135168
XT_TAB, XT_X = XT + 16384, XT + 18432
WS_ST, WS_CS, WS_SIDE, WS_SFL, WS_YFL, WS_STAMPS, WS_SIZE = 0x900000, 0x910000, 0xA00000, 0xA01000, 0xA04000, 0xB00000, 0xC00000
BIAS, OOB = 4096, 0x40000000
def fb(x): return "0x%08x" % struct.unpack("<I", struct.pack("<f", x))[0]
LOG2E = 1.4426950408889634
GC0 = -2 * LOG2E * 0.7978845608028654
NEG = fb(-1e30)

pX, pQKV, pWO, pW1, pB1, pW2, pB2, pOUT, pDBG, pWS = 4, 6, 8, 12, 14, 16, 18, 20, 22, 24
rA, rB, rWS, rC, rDBG, rW2, rWO, rX2, rOUT, rB2 = 28, 32, 36, 40, 44, 60, 64, 68, 72, 76
sKS, sMA, sMB, sOA, sOB, sOC, sI, sODD, sSID, sTW2, sTWO = 48, 49, 50, 51, 52, 53, 54, 55, 56, 58, 94
sEX = 80
sW, sRB, sCG, sMT, sNT = 82, 83, 84, 85, 86
sT0, sT1, sT2, sT3 = 87, 88, 89, 3
sQ = 90
sWB, sSTO, sFLG, sSTO6 = 96, 97, 98, 99
sCLK = 26
vLANE, vL16, vFL0, vTW, vTR = 255, 254, 253, 252, 250
vD, vE, vONE, vSTAMP, vGO, vTCH, vSF = 229, 218, 240, 241, 242, 243, 208
def srd(r): return f"s[{r}:{r+3}]"
def vr(b, n): return f"v[{b}:{b+n-1}]"
def ar(b, n): return f"a[{b}:{b+n-1}]"
def split(gs): return [[i] for g in gs for i in g]
def W(*tags): return [('wait', tags)]

class Gen:
    def __init__(self, stamps=False, opts=None):
        self.a = Asm(); self.stamps = stamps; self.o = opts or {}; self.tail = Asm()

    def stamp(self, a, k):
        if self.stamps and (self.o.get("smask", 0xffff) >> k) & 1:
            a(f"s_memrealtime s[{sCLK}:{sCLK+1}]\ns_memtime s[100:101]\ns_waitcnt lgkmcnt(0)\nv_writelane_b32 v{vSTAMP}, s{sCLK}, {k}\nv_writelane_b32 v{vSTAMP}, s100, {k+16}")

    def mk_srd(self, a, r, p, size, bias=0):
        if bias: a(f"s_sub_u32 s{r}, s{p}, {bias}\ns_subb_u32 s{r+1}, s{p+1}, 0")
        else: a(f"s_mov_b32 s{r}, s{p}\ns_mov_b32 s{r+1}, s{p+1}")
        a(f"s_mov_b32 s{r+2}, {size+bias}\ns_mov_b32 s{r+3}, 0x20000")

    def dma(self, v, i, r, so, masked=False, tag=None, after=()):
        g = []
        if masked: g += G(f"s_mov_b32 exec_hi, s{sEX}")
        g += G(f"buffer_load_dwordx4 v{v+i}, {srd(r)}, {so} offen offset:{(i&3)*1024} lds", tag=tag, after=after)
        if masked: g += G("s_mov_b32 exec_hi, -1")
        return g

    def stage_dmas(self, kind, s):
        if s >= 8: return [self.w2_dma(c) for c in range(11 * (s - 8), 11 * (s - 7))]
        r4, s4 = {"gen": (rC, sOC), "at": (rA, sOA), "ff": (rB, sOB)}[kind]
        g = []
        for i in range(11):
            if i % 4 == 0: g.append(G(f"s_add_u32 m0, s{sWB}, {(s%3)*SL + i*1024}"))
            if i < 4: d = self.dma(vD, i, rA, f"s{sOA}", tag=f"st{s}")
            elif i == 4: d = self.dma(vD, i, r4, f"s{s4}", masked=(kind != "ff"), tag=f"st{s}")
            else: d = self.dma(vD, i, rB, f"s{sOB}", tag=f"st{s}")
            g.append(d)
        if s < 7:
            if self.o.get("rcg") or self.o.get("rrb"):
                g += [G(f"s_add_u32 s{sKS}, s{sKS}, 1\ns_and_b32 s{sKS}, s{sKS}, 7"), G(f"s_lshl_b32 s{sOA}, s{sKS}, 7\ns_mul_i32 s{sOB}, s{sKS}, s{sMB}")]
            else: g.append(G(f"s_addk_i32 s{sOA}, 128\ns_add_u32 s{sOB}, s{sOB}, s{sMB}"))
        return g

    def ln_finalize(self, a, s1, s2, t, out):
        a(f"""
        v_mul_f32 v{s1}, {fb(1/512)}, v{s1}
        v_mul_f32 v{s2}, {fb(1/512)}, v{s2}
        v_fma_f32 v{s2}, -v{s1}, v{s1}, v{s2}
        v_max_f32 v{s2}, 0, v{s2}
        v_cvt_pk_bf16_f32 v{t}, 0, v{s2}
        v_add_f32 v{t}, {fb(1e-5)}, v{t}
        v_cvt_pk_bf16_f32 v{t}, 0, v{t}
        v_sqrt_f32 v{t}, v{t}
        v_cvt_pk_bf16_f32 v{out}, -v{s1}, v{t}
        """)

    def prologue(self):
        a = self.a; o = self.o
        a(f"""
        s_cmp_ge_u32 s2, 256
        s_cbranch_scc1 L_end
        s_load_dwordx16 s[4:19], s[0:1], 0
        s_load_dwordx4 s[20:23], s[0:1], 64
        s_load_dwordx2 s[24:25], s[0:1], 80
        v_lshrrev_b32 v1, 6, v0
        v_and_b32 v{vLANE}, 63, v0
        v_readfirstlane_b32 s{sW}, v1
        s_lshr_b32 s{sI}, s2, 3
        """)
        if o.get("codepf", 1):
            a(f"""
            s_getpc_b64 s[{sCLK}:{sCLK+1}]
            v_lshrrev_b32 v2, 4, v0
            v_lshl_add_u32 v2, s{sI}, 4, v2
            v_min_u32 v2, CODE_LINES, v2
            v_lshlrev_b32 v2, 7, v2
            v_mov_b32 v3, s{sCLK+1}
            v_add_co_u32 v2, vcc, s{sCLK}, v2
            v_addc_co_u32 v3, vcc, 0, v3, vcc
            global_load_dword v{vTCH}, v[2:3], off
            """)
        if self.stamps: a(f"v_mov_b32 v{vSTAMP}, 0")
        a(f"""
        v_lshrrev_b32 v2, 3, v{vLANE}
        v_and_b32 v3, 7, v{vLANE}
        v_lshrrev_b32 v4, 4, v{vLANE}
        v_lshlrev_b32 v{vL16}, 4, v{vLANE}
        v_and_b32 v5, 32, v{vLANE}
        v_lshl_add_u32 v5, v5, 4, v{vL16}
        s_lshl_b32 s{sSID}, s2, 2
        s_add_u32 s{sSID}, s{sSID}, s{sW}
        s_lshl_b32 s{sT0}, s{sSID}, 11
        s_lshr_b32 s{sT1}, s2, 2
        s_cmp_ge_u32 s{sT1}, 24
        s_movk_i32 s{sT2}, 3072
        s_cselect_b32 s{sT2}, 3584, s{sT2}
        s_cselect_b32 s{sT3}, 24, 0
        s_sub_u32 s{sT1}, s{sT1}, s{sT3}
        s_lshl_b32 s{sT1}, s{sT1}, 7
        s_and_b32 s{sT3}, s{sSID}, 15
        s_lshl_b32 s{sT3}, s{sT3}, 5
        s_mul_i32 s{sT3}, s{sT3}, s{sT2}
        s_add_u32 s{sT1}, s{sT1}, s{sT3}
        v_mul_u32_u24 v16, s{sT2}, v2
        v_lshl_add_u32 v16, v3, 4, v16
        s_lshl_b32 s{sT3}, s{sT2}, 3
        s_sub_u32 s{sT3}, s{sT3}, 1024
        v_add_u32 v17, s{sT3}, v16
        v_add_u32 v18, s{sT3}, v17
        v_add_u32 v19, s{sT3}, v18
        s_lshl_b32 s{rC+2}, s{sT2}, 9
        s_cmp_ge_u32 s2, 208
        s_cselect_b32 s{rC+2}, 0, s{rC+2}
        s_mov_b32 s{rC+3}, 0x20000
        s_lshl_b32 s{sT3}, s{sW}, 12
        s_add_u32 m0, s{sT3}, {XT}
        s_cmp_ge_u32 s2, 96
        s_waitcnt lgkmcnt(0)
        s_cselect_b32 s{rC}, s{pW1}, s{pQKV}
        s_cselect_b32 s{rC+1}, s{pW1+1}, s{pQKV+1}
        """)
        self.stamp(a, 0)
        self.mk_srd(a, rX2, pX, 2097152)
        for i in range(4): a(f"buffer_load_dwordx4 v{16+i}, {srd(rC)}, s{sT1} offen offset:{i*1024} lds", tag="side")
        for i in range(2): a(f"buffer_load_dwordx4 {vr(8+4*i,4)}, v5, {srd(rX2)}, s{sT0} offen offset:{512*i}", tag="side")
        self.mk_srd(a, rWS, pWS, WS_SIZE)
        a(f"""
        s_cmp_lg_u32 s{sSID}, 0
        s_cbranch_scc1 L_noclr
        v_lshlrev_b32 v6, 7, v{vLANE}
        v_mov_b32 v20, 0
        v_mov_b32 v21, 0
        v_mov_b32 v22, 0
        v_mov_b32 v23, 0
        s_mov_b32 s{sT0}, {WS_SIDE}
        s_mov_b32 s{sT1}, {WS_SFL}
        s_mov_b32 s{sT2}, {WS_YFL}
        s_mov_b32 s{sT3}, {WS_YFL + 8192}
        """)
        a(f"""
        buffer_store_dwordx4 v[20:23], v{vL16}, {srd(rWS)}, s{sT0} offen sc1
        buffer_store_dwordx4 v[20:23], v{vL16}, {srd(rWS)}, s{sT0} offen offset:1024 sc1
        buffer_store_dwordx4 v[20:23], v6, {srd(rWS)}, s{sT1} offen sc1
        buffer_store_dwordx4 v[20:23], v6, {srd(rWS)}, s{sT1} offen offset:16 sc1
        buffer_store_dwordx4 v[20:23], v6, {srd(rWS)}, s{sT2} offen sc1
        buffer_store_dwordx4 v[20:23], v6, {srd(rWS)}, s{sT3} offen sc1
        """, tag="untracked")
        a("L_noclr:")
        m = o.get("map", 0)
        lc = (2, 0, 1)[m]; lr = 3 - lc; li = 4 - lr
        a(f"""
        s_and_b32 s{sT0}, s2, 7
        s_lshr_b32 s{sRB}, s{sT0}, {lc}
        s_lshl_b32 s{sRB}, s{sRB}, {li}
        s_and_b32 s{sT2}, s{sI}, {(1 << li) - 1}
        s_add_u32 s{sRB}, s{sRB}, s{sT2}
        s_and_b32 s{sCG}, s{sT0}, {(1 << lc) - 1}
        s_lshl_b32 s{sCG}, s{sCG}, {3 - lc}
        s_bfe_u32 s{sT2}, s{sI}, {hex(((4 - li) << 16) | li)}
        s_add_u32 s{sCG}, s{sCG}, s{sT2}
        s_lshr_b32 s{sT2}, s{sRB}, {o.get("rsh", 0)}
        s_mul_i32 s{sT2}, s{sT2}, {o.get("rrb", 0)}
        s_mul_i32 s{sKS}, s{sCG}, {o.get("rcg", 0)}
        s_add_u32 s{sKS}, s{sKS}, s{sT2}
        s_and_b32 s{sKS}, s{sKS}, 7
        v_xor_b32 v5, v3, v4
        v_lshlrev_b32 v5, 4, v5
        v_lshl_add_u32 v5, v2, 11, v5
        s_lshl_b32 s{sT3}, s{sRB}, 17
        s_lshl_b32 s{sT2}, s{sW}, 15
        s_add_u32 s{sT2}, s{sT2}, s{sT3}
        s_add_u32 s{sT2}, s{sT2}, {BIAS}
        v_add_u32 v{vD}, s{sT2}, v5
        v_xor_b32 v5, 64, v{vD}
        v_add_u32 v{vD+1}, {16384-1024}, v5
        v_add_u32 v{vD+2}, {1024-2048}, v{vD}
        v_add_u32 v{vD+3}, {17408-3072}, v5
        s_mul_i32 s{sWB}, s{sW}, {WR}
        s_lshl_b32 s{sOA}, s{sKS}, 7
        """)
        self.mk_srd(a, rA, pX, 2097152, BIAS)
        st0 = self.stage_dmas("gen", 0)
        for g in st0[:5]: a.extend(g)
        a("s_bitcmp1_b32 s2, 7\ns_cbranch_scc1 L_pro_ffn")
        a(f"""
        s_lshl_b32 s{sT2}, s{sW}, 2
        v_add_u32 v7, s{sT2}, v2
        v_and_b32 v5, 7, v7
        v_bfe_u32 v6, v7, 3, 1
        v_lshl_add_u32 v5, v5, 1, v6
        v_bfe_u32 v6, v7, 1, 3
        v_xor_b32 v6, v3, v6
        v_lshlrev_b32 v6, 4, v6
        v_lshl_add_u32 v5, v5, 10, v6
        s_sub_u32 s{sT3}, s{sT3}, {16384-BIAS}
        s_cselect_b32 s{sT3}, {OOB}, s{sT3}
        v_add_u32 v{vD+4}, s{sT3}, v5
        s_mov_b32 s{sEX}, 0
        v_and_b32 v7, 1, v4
        v_lshlrev_b32 v7, 1, v7
        v_xor_b32 v7, v3, v7
        v_lshlrev_b32 v7, 4, v7
        v_mul_u32_u24 v6, 3072, v2
        s_mul_i32 s{sT2}, s{sW}, {16*3072}
        s_lshl_b32 s{sT3}, s{sCG}, 7
        s_add_u32 s{sT2}, s{sT2}, s{sT3}
        v_add3_u32 v7, v7, v6, s{sT2}
        v_xor_b32 v6, 64, v7
        """)
        for i in range(5, 11):
            p, u = (i - 5) >> 1, (i - 5) & 1
            a(f"v_add_u32 v{vD+i}, {BIAS + p*1024 + u*8*3072 - (i&3)*1024}, v{6 if u else 7}")
        a(f"s_mov_b32 s{sMB}, {64*3072}\ns_mov_b32 s{sOC}, s{sOA}")
        self.mk_srd(a, rB, pQKV, 512*3072, BIAS)
        self.mk_srd(a, rC, pX, 2097152, BIAS)
        a("s_branch L_pro_join\nL_pro_ffn:")
        a(f"""
        v_and_b32 v7, 3, v{vLANE}
        v_lshlrev_b32 v7, 4, v7
        v_lshrrev_b32 v5, 2, v{vLANE}
        v_mul_u32_u24 v6, 3584, v5
        v_and_b32 v5, 7, v5
        v_mul_u32_u24 v5, 3584, v5
        v_and_b32 v20, 32, v{vLANE}
        v_lshl_add_u32 v5, v20, 1, v5
        s_mul_i32 s{sT2}, s{sW}, {16*3584}
        s_mul_i32 s{sT3}, s{sCG}, 448
        s_add_u32 s{sT2}, s{sT2}, s{sT3}
        s_add_u32 s{sT2}, s{sT2}, {BIAS}
        s_bitcmp1_b32 s{sCG}, 0
        s_cselect_b32 s{sT3}, 0, 384
        s_cselect_b32 s{sT0}, 64, 0
        s_add_u32 s{sT3}, s{sT3}, s{sT2}
        s_add_u32 s{sT2}, s{sT2}, s{sT0}
        v_add3_u32 v{vD+4}, v7, v6, s{sT3}
        v_add3_u32 v7, v7, v5, s{sT2}
        """)
        for i in range(5, 11):
            p, u = (i - 5) >> 1, (i - 5) & 1
            a(f"v_add_u32 v{vD+i}, {p*128 + u*8*3584 - (i&3)*1024}, v7")
        a(f"s_mov_b32 s{sEX}, -1\ns_mov_b32 s{sMB}, {64*3584}\ns_mul_i32 s{sOC}, s{sKS}, s{sMB}")
        self.mk_srd(a, rB, pW1, 512*3584, BIAS)
        self.mk_srd(a, rC, pW1, 512*3584, BIAS)
        a("L_pro_join:")
        a(f"s_mul_i32 s{sOB}, s{sKS}, s{sMB}")
        for g in st0[5:7]: a.extend(g)
        self.mk_srd(a, rDBG, pDBG, 256)
        a(f"""
        v_mov_b32 v{vONE}, 1
        s_and_b32 s{sT2}, s2, 7
        s_lshl_b32 s{sMT}, s{sT2}, 2
        s_and_b32 s{sT2}, s{sI}, 3
        s_add_u32 s{sMT}, s{sMT}, s{sT2}
        s_lshr_b32 s{sNT}, s{sI}, 2
        v_bfe_u32 v7, v{vLANE}, 2, 3
        v_lshlrev_b32 v7, 10, v7
        v_and_b32 v5, 3, v{vLANE}
        v_lshl_add_u32 v7, v5, 4, v7
        v_lshrrev_b32 v6, 5, v{vLANE}
        s_and_b32 s{sT2}, s{sW}, 1
        v_xor_b32 v20, s{sT2}, v6
        v_lshl_add_u32 v7, v20, 6, v7
        s_lshl_b32 s{sT2}, s{sNT}, 7
        v_add_u32 v{vE}, s{sT2}, v7
        """)
        for i in range(1, 11): a(f"v_add_u32 v{vE+i}, {i*8192 - (i&3)*1024}, v{vE}")
        a(f"""
        v_bfe_u32 v7, v{vLANE}, 2, 2
        v_lshl_add_u32 v21, v4, 3, v7
        v_lshlrev_b32 v21, 7, v21
        v_lshl_add_u32 v21, v5, 3, v21
        s_lshl_b32 s{sT2}, s{sW}, 5
        s_add_u32 s{sT2}, s{sT2}, {XT}
        v_add_u32 v21, s{sT2}, v21
        v_lshl_add_u32 v7, v6, 2, v7
        v_lshlrev_b32 v7, 6, v7
        v_bfe_u32 v20, v{vLANE}, 4, 1
        v_lshl_add_u32 v7, v20, 5, v7
        v_lshl_add_u32 v7, v5, 3, v7
        v_add_u32 v{vTR}, s{sWB}, v7
        v_add_u32 v{vTR+1}, {2*SL}, v{vTR}
        s_lshl_b32 s{sT2}, s{sW}, 17
        s_sub_u32 s{rWO+2}, 524288, s{sT2}
        s_add_u32 s{rWO}, s{pWO}, s{sT2}
        s_addc_u32 s{rWO+1}, s{pWO+1}, 0
        s_mov_b32 s{rWO+3}, 0x20000
        s_mul_i32 s{sT2}, s{sW}, {448*1024}
        s_sub_u32 s{rW2+2}, {1792*1024}, s{sT2}
        s_add_u32 s{rW2}, s{pW2}, s{sT2}
        s_addc_u32 s{rW2+1}, s{pW2+1}, 0
        s_mov_b32 s{rW2+3}, 0x20000
        v_mov_b32 v22, {OOB}
        v_cmp_eq_u32 vcc, 0, v0
        v_mov_b32 v24, 0x3f803f80
        v_mov_b32 v25, v24
        v_cndmask_b32 v{vFL0}, v22, v0, vcc
        v_cmp_gt_u32 vcc, 16, v{vLANE}
        v_mov_b32 v26, v24
        v_mov_b32 v27, v24
        v_cndmask_b32 v28, v22, v{vL16}, vcc
        v_and_b32 v29, 31, v{vLANE}
        v_cmp_eq_u32 vcc, 0, v29
        v_lshlrev_b32 v29, 1, v{vLANE}
        v_min_u32 v{vTW}, 27, v{vLANE}
        v_cndmask_b32 v29, v22, v29, vcc
        v_lshlrev_b32 v{vTW}, 7, v{vTW}
        s_mul_i32 s{sTW2}, s{sI}, {28*128}
        s_lshl_b32 s{sTWO}, s{sI}, 12
        """)
        self.mk_srd(a, rOUT, pOUT, 2097152)
        self.mk_srd(a, rB2, pB2, 1024)
        a.save("pro")
        a("s_bitcmp1_b32 s2, 7\ns_cbranch_scc1 L_ffn")

    def side_job(self, a, kind):
        for g in self.stage_dmas(kind, 0)[7:]: a.extend(g)
        a.wait("side")
        if kind == "at":
            a(f"s_cmp_lg_u32 s{sSID}, 0\ns_cbranch_scc1 L_nogo")
            a(f"buffer_store_dword v{vONE}, v{vFL0}, {srd(rDBG)}, 0 offen sc1", tag="untracked")
            a("L_nogo:")
        a("s_barrier")
        self.stamp(a, 1)
        for s in range(4):
            for e in range(2): a(f"ds_read_b64_tr_b16 {vr(32+4*s+2*e,2)}, v21 offset:{4096*s + 512*e}")
        a("v_dot2_f32_bf16 v16, v8, v24, 0\nv_dot2_f32_bf16 v17, v8, v8, 0")
        for d in range(9, 16): a(f"v_dot2_f32_bf16 v16, v{d}, v24, v16\nv_dot2_f32_bf16 v17, v{d}, v{d}, v17")
        for s in range(4): a(f"v_mfma_f32_16x16x32_bf16 v[48:51], v[24:27], {vr(32+4*s,4)}, {'0' if s == 0 else 'v[48:51]'}")
        a(f"""
        v_permlane16_swap_b32 v16, v17
        s_lshr_b32 s{sT0}, s{sSID}, 4
        s_lshl_b32 s{sT0}, s{sT0}, 5
        v_add_f32 v16, v16, v17
        s_and_b32 s{sT1}, s{sSID}, 15
        s_add_u32 s{sT0}, s{sT0}, s{sT1}
        v_add_f32_dpp v16, v16, v16 row_ror:8 row_mask:0xf bank_mask:0xf
        s_lshl_b32 s{sT0}, s{sT0}, 2
        s_add_u32 s{sT0}, s{sT0}, {WS_ST}
        v_add_f32_dpp v16, v16, v16 row_ror:4 row_mask:0xf bank_mask:0xf
        s_lshr_b32 s{sT1}, s2, 2
        s_lshl_b32 s{sT1}, s{sT1}, 2
        v_add_f32_dpp v16, v16, v16 row_ror:2 row_mask:0xf bank_mask:0xf
        s_add_u32 s{sT1}, s{sT1}, s{sW}
        s_lshl_b32 s{sT1}, s{sT1}, 6
        v_add_f32_dpp v16, v16, v16 row_ror:1 row_mask:0xf bank_mask:0xf
        s_and_b32 s{sT2}, s2, 3
        s_add_u32 s{sT1}, s{sT1}, s{sT2}
        v_mov_b32 v17, v16
        s_lshl_b32 s{sT1}, s{sT1}, 2
        s_add_u32 s{sT1}, s{sT1}, {WS_CS}
        v_permlane16_swap_b32 v16, v17
        s_mov_b32 s{sT2}, 0x07060302
        v_and_b32 v49, 0xffff0000, v48
        v_sub_f32 v49, v48, v49
        v_perm_b32 v48, v49, v48, s{sT2}
        """)
        self.ln_finalize(a, 16, 17, 18, 18)
        a(f"v_mov_b32 v{vGO}, 0")
        a(f"buffer_store_dword v48, v28, {srd(rWS)}, s{sT1} offen sc1", tag="sst")
        a(f"buffer_store_dword v18, v29, {srd(rWS)}, s{sT0} offen sc1", tag="sst")
        for g in self.stage_dmas(kind, 1): a.extend(g)
        if self.o.get("w2pf", 1):
            a(f"""
            s_mul_i32 s{sT3}, s{sSID}, {14*128}
            s_lshl_b32 s{sT2}, s{sSID}, 9
            s_add_u32 s{sCLK}, s{pW2}, s{sT3}
            s_addc_u32 s{sCLK+1}, s{pW2+1}, 0
            v_min_u32 v16, {13*128}, v{vTW}
            v_and_b32 v17, 0x180, v16
            s_add_u32 s{sQ}, s{pWO}, s{sT2}
            s_addc_u32 s{sQ+1}, s{pWO+1}, 0
            global_load_dword v{vTCH+1}, v16, s[{sCLK}:{sCLK+1}]
            global_load_dword v{vTCH+2}, v17, s[{sQ}:{sQ+1}]
            """)
        a(f"buffer_load_dword v{vGO}, v{vGO}, {srd(rDBG)}, 0 offen sc1")

    def spin(self, name, load, test):
        t = self.tail
        t(f"L_{name}_spin:\ns_mov_b32 s{sT1}, 0\nL_{name}_spin2:")
        t(load, tag="untracked")
        t(f"s_add_u32 s{sT1}, s{sT1}, 1\ns_waitcnt vmcnt(0)\ns_cmp_ge_u32 s{sT1}, 0x100000\ns_cbranch_scc1 L_{name}_ok")
        t(test)
        t(f"s_cbranch_scc0 L_{name}_spin2\ns_branch L_{name}_ok")

    def hooks(self, pre):
        h = {s: [] for s in range(9)}
        test = f"v_readfirstlane_b32 s{sT0}, v{vGO}\ns_cmp_lg_u32 s{sT0}, 0"
        self.spin(pre + "go", f"v_mov_b32 v{vGO}, 0\nbuffer_load_dword v{vGO}, v{vGO}, {srd(rDBG)}, 0 offen sc1", test)
        h[1].append(G(test + f"\ns_cbranch_scc0 L_{pre}go_spin\nL_{pre}go_ok:\ns_lshl_b32 s{sT0}, s2, 3\ns_add_u32 s{sT0}, s{sT0}, {WS_SIDE}") +
                    G(f"buffer_store_dword v{vONE}, v{vFL0}, {srd(rWS)}, s{sT0} offen sc1"))
        if self.o.get("l2pf", 1):
            for k in range(4):
                h[1 + k].append(G(f"s_add_u32 s{sT0}, s{sTW2}, {k*112*1024}\nbuffer_load_dword v{vTCH+3+(k&1)}, v{vTW}, {srd(rW2)}, s{sT0} offen"))
            h[4].append(G(f"v_and_b32 v{vTW}, 31, v{vLANE}\nv_lshlrev_b32 v{vTW}, 7, v{vTW}"))
            h[5].append(G(f"buffer_load_dword v{vTCH+5}, v{vTW}, {srd(rWO)}, s{sTWO} offen"))
        sf = self.o.get("sf", 4)
        ld = f"s_mov_b32 s{sT0}, {WS_SIDE}\n" + "\n".join(f"buffer_load_dwordx4 {vr(vSF+4*i,4)}, v{vL16}, {srd(rWS)}, s{sT0} offen offset:{1024*i} sc1" for i in range(2))
        test = f"""v_and_b32 v{vSF}, v{vSF}, v{vSF+2}
        v_and_b32 v{vSF+4}, v{vSF+4}, v{vSF+6}
        v_and_b32 v{vSF}, v{vSF}, v{vSF+4}
        v_cmp_eq_u32 vcc, 1, v{vSF}
        s_cmp_eq_u64 vcc, -1"""
        self.spin(pre + "sf", ld, test)
        h[sf].append(G(ld))
        h[sf + 1].append(G(test + f"\ns_cbranch_scc0 L_{pre}sf_spin\nL_{pre}sf_ok:"))
        return h

    @staticmethod
    def chunk_lds(c):
        idx = c % 33
        return ((2, 0, 1)[idx // 11]) * SL + (idx % 11) * 1024
    def tr_read(self, dst, c, half):
        off = self.chunk_lds(c) + 512 * half
        if off >= 2 * SL: return f"ds_read_b64_tr_b16 {dst}, v{vTR+1} offset:{off - 2*SL}"
        return f"ds_read_b64_tr_b16 {dst}, v{vTR} offset:{off}"
    def w2_dma(self, c, after=()):
        i = c % 11
        if 44 <= c < 60: r, e = rWO, c - 44
        else: r, e = rW2, (c if c < 44 else c - 16)
        g = []
        if i % 4 == 0: g += G(f"s_add_u32 m0, s{sWB}, {self.chunk_lds(c)}")
        if i == 0 or c == 60: g += G(f"s_mov_b32 s{sOC}, {(e - i)*8192}")
        return g + self.dma(vE, i, r, f"s{sOC}", tag=f"c{c}", after=after)
    def w2_engine(self):
        gen = self
        class Eng:
            d = 22; r = 0
            def R(e, n=1):
                g = []
                n = min(n, 40 - e.r, e.d - e.r)
                for c in range(e.r, e.r + n):
                    for h in range(2):
                        g += G(gen.tr_read(ar(8 * (c >> 1) + 4 * h + 2 * (c & 1), 2), c, h), tag=f"r{c}", after=[f"c{e.r+n-1}"])
                e.r += n
                return g
            def D(e, n=1):
                g = []
                n = min(n, 72 - e.d, e.r + 33 - e.d)
                for c in range(e.d, e.d + n): g += gen.w2_dma(c, after=[f"r{e.d+n-34}"])
                e.d += n
                return g
            def drain(e, k=4):
                g = []
                while e.d < 72 or e.r < 40:
                    d = e.D(k); g += d + e.R(k)
                return g
        return Eng()

    def publish(self, a):
        a.wait("st")
        a(f"""
        s_mov_b64 exec, 1
        buffer_store_dword v{vONE}, v{vL16}, {srd(rWS)}, s{sFLG} offen sc1
        s_mov_b64 exec, -1
        """)

    def stage_top(self, a, s):
        if s < 8: a.wait(f"st{s}", "rd")
        else: a.wait("rd")
        a("s_barrier")

    def attention(self):
        a = self.a; o = self.o
        Q, K, V = 0, 36, 72
        xb, hb, wb = 108, 114, 118
        aA, aB, vST, vTB, vSV = 121, 122, 123, 124, 125
        bC, bP, bH0, bH1, mC, mP, one4 = 128, 132, 136, 140, 144, 146, 148
        csq, csk, csv, sA, Vp, sBuf, SP = 152, 156, 32, 160, 178, 0, 0
        FB = 160
        fX = lambda b, T: FB + 48 * b + 4 * T
        fW = lambda b, p: FB + 48 * b + 36 + 4 * p
        cT = 148
        a(f"""
        v_and_b32 v30, 15, v{vLANE}
        v_lshrrev_b32 v7, 1, v30
        v_xor_b32 v7, v4, v7
        v_lshlrev_b32 v7, 4, v7
        v_lshl_add_u32 v{xb}, v30, 7, v7
        v_xor_b32 v{xb+1}, 64, v{xb}
        v_add_u32 v{xb+2}, {SL}, v{xb}
        v_add_u32 v{xb+3}, {SL}, v{xb+1}
        v_add_u32 v{xb+4}, {2*SL}, v{xb}
        v_add_u32 v{xb+5}, {2*SL}, v{xb+1}
        v_lshrrev_b32 v5, 2, v30
        v_mul_u32_u24 v6, {WR}, v5
        v_and_b32 v31, 3, v30
        v_lshl_add_u32 v6, v31, 7, v6
        v_add_u32 v{hb}, v6, v7
        v_xor_b32 v{hb+1}, 64, v{hb}
        v_add_u32 v{hb+2}, {2*SL}, v{hb}
        v_add_u32 v{hb+3}, {2*SL}, v{hb+1}
        v_lshrrev_b32 v7, 1, v4
        v_and_b32 v6, 1, v4
        v_lshl_add_u32 v20, v6, 1, v7
        v_lshl_add_u32 v20, v20, 4, v30
        v_lshlrev_b32 v{vST}, 4, v20
        v_mul_u32_u24 v7, {WR}, v7
        v_lshl_add_u32 v7, v6, 10, v7
        v_lshl_add_u32 v7, v5, 7, v7
        v_lshl_add_u32 v7, v31, 3, v7
        v_lshrrev_b32 v20, 1, v5
        v_lshl_or_b32 v20, v6, 1, v20
        v_xor_b32 v20, s{sW}, v20
        v_lshl_add_u32 v{wb}, v20, 5, v7
        v_add_u32 v{wb+1}, {SL}, v{wb}
        v_add_u32 v{wb+2}, {2*SL}, v{wb}
        v_lshlrev_b32 v{aA}, 2, v30
        v_add_u32 v{aA}, {XT_TAB}, v{aA}
        v_and_b32 v{aB}, 48, v{vLANE}
        v_add_u32 v{aB}, {XT_TAB}, v{aB}
        v_min_u32 v20, 143, v0
        v_lshlrev_b32 v{vTB}, 2, v20
        v_add_u32 v{vTB}, {XT_TAB}, v{vTB}
        v_and_b32 v23, 8, v20
        v_add_u32 v23, v20, v23
        v_subrev_u32 v23, 152, v23
        v_cmp_le_u32 vcc, 128, v20
        s_lshl_b32 s{sT0}, s{sRB}, 7
        v_mov_b32 v{one4}, v24
        v_cndmask_b32 v20, v20, v23, vcc
        v_add_u32 v20, s{sT0}, v20
        v_max_i32 v20, 0, v20
        v_lshlrev_b32 v{vSV}, 2, v20
        v_mov_b32 v{one4+1}, v24
        v_mov_b32 v{one4+2}, v24
        v_mov_b32 v{one4+3}, v24
        v_mov_b32 v{vSV+1}, v28
        v_lshlrev_b32 v7, 2, v4
        v_sub_u32 v7, v30, v7
        v_mov_b32 v52, {NEG}
        s_cmp_eq_u32 s{sRB}, 0
        s_cselect_b32 s{sT0}, {NEG}, 0
        v_mov_b32 v53, s{sT0}
        v_cmp_le_u32 vcc, 2, v4
        v_mov_b32 v54, 0
        s_mov_b32 s{sT0}, 0xffff
        v_cndmask_b32 v55, v53, v52, vcc
        """)
        for r in range(4):
            a(f"""
            v_subrev_u32 v6, {r}, v7
            v_cmp_ge_u32 vcc, 7, v6
            v_cmp_ge_i32 s[{sQ}:{sQ+1}], -9, v6
            v_ashrrev_i32 v{56+r}, 31, v6
            v_cndmask_b32 v{bC+r}, v52, v54, vcc
            v_cndmask_b32 v{bP+r}, v52, v54, s[{sQ}:{sQ+1}]
            v_cndmask_b32 v{bH1+r}, v52, v53, s[{sQ}:{sQ+1}]
            v_bfi_b32 v{bH0+r}, v{56+r}, v55, v52
            """)
        a(f"""
        v_bfi_b32 v{mP}, s{sT0}, v56, v57
        v_bfi_b32 v{mP+1}, s{sT0}, v58, v59
        v_not_b32 v{mC}, v{mP}
        v_not_b32 v{mC+1}, v{mP+1}
        s_lshl_b32 s{sT0}, s{sCG}, 2
        s_add_u32 s{sT0}, s{sT0}, s{sW}
        s_mul_i32 s{sSTO}, s{sRB}, 288
        s_add_u32 s{sSTO}, s{sSTO}, s{sT0}
        s_lshl_b32 s{sSTO}, s{sSTO}, 11
        s_lshl_b32 s{sSTO6}, s{sT0}, 8
        s_add_u32 s{sSTO6}, s{sSTO6}, {WS_CS}
        s_lshr_b32 s{sT1}, s{sT0}, 3
        s_and_b32 s{sT0}, s{sT0}, 7
        s_lshl_b32 s{sFLG}, s{sRB}, 2
        s_add_u32 s{sFLG}, s{sFLG}, s{sT1}
        s_lshl_b32 s{sFLG}, s{sFLG}, 5
        s_add_u32 s{sFLG}, s{sFLG}, s{sT0}
        s_lshl_b32 s{sFLG}, s{sFLG}, 2
        s_add_u32 s{sFLG}, s{sFLG}, {WS_SFL}
        """)
        self.side_job(a, "at")
        def reads(s, b):
            g = []; sl = s % 3
            for p in range(3):
                for e in range(2):
                    g.append(G(f"ds_read_b64_tr_b16 {ar(fW(b,p)+2*e,2)}, v{wb+sl} offset:{5120 + 2*b*WR + p*2048 + e*512}", tag=f"w{b}"))
            for T in range(8):
                g.append(G(f"ds_read_b128 {ar(fX(b,T),4)}, v{xb+2*sl+b} offset:{(T>>1)*WR + (T&1)*2048}", tag=f"x{b}{T}"))
            g.append(G(f"ds_read_b128 {ar(fX(b,8),4)}, v{hb+2*(sl>>1)+b} offset:{4096 + (sl&1)*SL}", tag="rd"))
            return g
        def mfmas(b, first=False):
            g = []
            for T in range(9):
                aft = {0: [f"w{b}", f"x{b}2"], 3: [f"x{b}5"]}.get(T, [])
                c = lambda r: "0" if first else vr(r, 4)
                if T < 8: g.append(G(f"v_mfma_f32_16x16x32_bf16 {vr(Q+4*T,4)}, {ar(fW(b,0),4)}, {ar(fX(b,T),4)}, {c(Q+4*T)}", after=aft))
                g.append(G(f"v_mfma_f32_16x16x32_bf16 {vr(K+4*T,4)}, {ar(fW(b,1),4)}, {ar(fX(b,T),4)}, {c(K+4*T)}"))
                g.append(G(f"v_mfma_f32_16x16x32_bf16 {vr(V+4*T,4)}, {ar(fX(b,T),4)}, {ar(fW(b,2),4)}, {c(V+4*T)}"))
            return g
        h = self.hooks("at"); sf = o.get("sf", 4)
        h[sf+1].append(G(f"s_mov_b32 s{sT0}, {WS_ST}\nbuffer_load_dword v{vSV}, v{vSV}, {srd(rWS)}, s{sT0} offen sc1"))
        for p in range(3):
            h[sf+1].append(G(f"s_add_u32 s{sT0}, s{sSTO6}, {p*8192}\nbuffer_load_dwordx4 {ar(cT+4*p,4)}, v{vSV+1}, {srd(rWS)}, s{sT0} offen sc1"))
        h[sf+2] += [G(f"v_and_b32 v{vSV+1}, 0xffff0000, v{vSV}\nv_lshlrev_b32 v{vSV}, 16, v{vSV}"), G(f"v_rcp_f32 v{vSV+1}, v{vSV+1}"),
                    G(f"ds_write2_b32 v{vTB}, v{vSV}, v{vSV+1} offset0:0 offset1:144", tag="rd")]
        csm = [G(f"v_mfma_f32_16x16x32_bf16 {vr(csq,4)}, {ar(cT,4)}, {vr(one4,4)}, 0"),
               G(f"v_mfma_f32_16x16x32_bf16 {vr(csk,4)}, {ar(cT+4,4)}, {vr(one4,4)}, 0"),
               G(f"v_mfma_f32_16x16x32_bf16 {vr(csv,4)}, {vr(one4,4)}, {ar(cT+8,4)}, 0")]
        eng = self.w2_engine()
        for s in range(8):
            self.stage_top(a, s)
            if s == 0: self.stamp(a, 2)
            dm = [] if o.get("nodma") else self.stage_dmas("at", s + 2)
            k = len(dm) * 3 // 5
            if o.get("nocomp"):
                for g in dm + h[s]: a.extend(g)
                continue
            if s == 0:
                for g in reads(0, 0) + dm[:k]: a.extend(g)
            else: a.extend(pack(mfmas(1), merge(reads(s, 0), dm[:k] or [[]])))
            a.extend(pack(mfmas(0, s == 0), merge(reads(s, 1), dm[k:k+2] or [[]]) + dm[k+2:] + h[s]))
        self.stage_top(a, 8)
        self.stamp(a, 3)
        sBuf = SP = 186
        Vp = 108
        rdA = [G(f"ds_read_b32 v{sA+2*T}, v{aA} offset:{64*T}\nds_read_b32 v{sA+2*T+1}, v{aA} offset:{576+64*T}") for T in range(9)]
        a.extend(pack(csm + mfmas(1), merge(rdA, [eng.D(1) for _ in range(o.get("at_pre", 8))], [eng.R(1) for _ in range(8)])))
        a(f"v_mov_b32 v{sA+18}, v{aB}\nv_mov_b32 v{sA+19}, v{vST}")
        aB, vST = sA + 18, sA + 19
        main = []
        def M(t): main.append(G(t))
        def rdB(T): M(f"ds_read_b128 {vr(sBuf+8*(T%4),4)}, v{aB} offset:{64*T}\nds_read_b128 {vr(sBuf+8*(T%4)+4,4)}, v{aB} offset:{576+64*T}")
        for T in range(4): rdB(T)
        M("s_waitcnt lgkmcnt(8)")
        for T in range(9):
            s = vr(sA+2*T, 2)
            for hh in range(2): M(f"v_pk_fma_f32 {vr(K+4*T+2*hh,2)}, {vr(csk+2*hh,2)}, {s}, {vr(K+4*T+2*hh,2)} op_sel_hi:[1,0,1]")
            if T < 8:
                for hh in range(2): M(f"v_pk_fma_f32 {vr(Q+4*T+2*hh,2)}, {vr(csq+2*hh,2)}, {s}, {vr(Q+4*T+2*hh,2)} op_sel_hi:[1,0,1]")
            for hh in range(2): M(f"v_pk_mul_f32 {vr(K+4*T+2*hh,2)}, {vr(K+4*T+2*hh,2)}, {s} op_sel:[0,1] op_sel_hi:[1,1]")
            if T < 8:
                for hh in range(2): M(f"v_cvt_pk_bf16_f32 v{Q+4*T+hh}, v{Q+4*T+2*hh}, v{Q+4*T+2*hh+1}")
                M(f"v_mul_f32 v{sA+2*T+1}, {fb(0.25*LOG2E)}, v{sA+2*T+1}")
            for hh in range(2): M(f"v_cvt_pk_bf16_f32 v{K+4*T+hh}, v{K+4*T+2*hh}, v{K+4*T+2*hh+1}")
        vp = lambda T: Vp + 10 * (T & 1) + 2 + 2 * (T >> 1) if T < 8 else Vp
        for T in range(9):
            sb = sBuf + 8 * (T % 4)
            for hh in range(2): M(f"v_pk_fma_f32 {vr(V+4*T+2*hh,2)}, {vr(sb+2*hh,2)}, {vr(csv,2)}, {vr(V+4*T+2*hh,2)}")
            for hh in range(2): M(f"v_pk_mul_f32 {vr(V+4*T+2*hh,2)}, {vr(V+4*T+2*hh,2)}, {vr(sb+4+2*hh,2)}")
            if T in (1, 3): rdB(T + 3); rdB(T + 4)
            if T == 4: rdB(8)
            for hh in range(2): M(f"v_cvt_pk_bf16_f32 v{vp(T)+hh}, v{V+4*T+2*hh}, v{V+4*T+2*hh+1}")
        M(f"v_mov_b32 v{Vp+10}, v{Vp}\nv_mov_b32 v{Vp+11}, v{Vp+1}")
        mx = lambda T: Q + 4 * T + 2
        def smax(T):
            for r in range(4): M(f"v_max_f32 v{V+4*T+r}, v{V+4*T+r}, v{SP+4*T+r}")
        for T in range(8):
            prev = T - 2 if T >= 2 else 8
            bias = bP if T >= 2 else (bH0, bH1)[T]
            M(f"v_mfma_f32_16x16x16_bf16 {vr(V+4*T,4)}, {vr(K+4*T,2)}, {vr(Q+4*T,2)}, {vr(bC,4)}")
            M(f"v_mfma_f32_16x16x16_bf16 {vr(SP+4*T,4)}, {vr(K+4*prev,2)}, {vr(Q+4*T,2)}, {vr(bias,4)}")
            if T >= 4: smax(T - 4)
        for T in range(4, 8): smax(T)
        for T in range(8): M(f"v_max3_f32 v{mx(T)}, v{V+4*T}, v{V+4*T+1}, v{V+4*T+2}")
        for T in range(8): M(f"v_max_f32 v{mx(T)}, v{mx(T)}, v{V+4*T+3}")
        for T in range(0, 8, 2): M(f"v_permlane32_swap_b32 v{mx(T)}, v{mx(T+1)}")
        for T in range(0, 8, 2): M(f"v_max_f32 v{mx(T)}, v{mx(T)}, v{mx(T+1)}")
        for T in (0, 4): M(f"v_permlane16_swap_b32 v{mx(T)}, v{mx(T+2)}")
        for T in (0, 4): M(f"v_max_f32 v{mx(T)}, v{mx(T)}, v{mx(T+2)}")
        for T in (0, 4): M(f"v_mov_b32 v{mx(T+2)}, v{mx(T)}")
        for T in (0, 4): M(f"v_permlane16_swap_b32 v{mx(T)}, v{mx(T+2)}")
        for T in range(0, 8, 2): M(f"v_mov_b32 v{mx(T+1)}, v{mx(T)}")
        for T in range(0, 8, 2): M(f"v_permlane32_swap_b32 v{mx(T)}, v{mx(T+1)}")
        for T in range(8): M(f"v_mul_f32_e64 v{sA+2*T}, -v{mx(T)}, v{sA+2*T+1}")
        for T in range(8):
            for hh in range(2):
                M(f"v_pk_fma_f32 {vr(V+4*T+2*hh,2)}, {vr(V+4*T+2*hh,2)}, {vr(sA+2*T,2)}, {vr(sA+2*T,2)} op_sel:[0,1,0] op_sel_hi:[1,1,0]")
        for T in range(8):
            for r in range(4): M(f"v_exp_f32 v{V+4*T+r}, v{V+4*T+r}")
        for T in range(8):
            for hh in range(2): M(f"v_cvt_pk_bf16_f32 v{V+4*T+hh}, v{V+4*T+2*hh}, v{V+4*T+2*hh+1}")
        def pv(T): M(f"v_mfma_f32_16x16x32_bf16 {vr(Q+4*T,4)}, {vr(vp(T)-2,4)}, {vr(SP+4*T,4)}, 0")
        for T in range(8):
            M(f"v_mfma_f32_16x16x16_bf16 {vr(K+4*T,4)}, {vr(one4,2)}, {vr(V+4*T,2)}, 0")
            for hh in range(2): M(f"v_and_b32 v{SP+4*T+hh}, v{mP+hh}, v{V+4*T+hh}")
            if T >= 1: pv(T - 1)
            for hh in range(2): M(f"v_and_b32 v{SP+4*T+2+hh}, v{mC+hh}, v{V+4*T+hh}")
        for T in range(2): M(f"v_rcp_f32 v{K+4*T}, v{K+4*T}")
        pv(7)
        for T in range(2, 8): M(f"v_rcp_f32 v{K+4*T}, v{K+4*T}")
        for T in range(8):
            for hh in range(2): M(f"v_pk_mul_f32 {vr(Q+4*T+2*hh,2)}, {vr(Q+4*T+2*hh,2)}, {vr(K+4*T,2)} op_sel_hi:[1,0]")
        for T in range(8):
            for hh in range(2): M(f"v_cvt_pk_bf16_f32 v{V+2*T+hh}, v{Q+4*T+2*hh}, v{Q+4*T+2*hh+1}")
        for u in range(4):
            for hh in range(2): M(f"v_permlane32_swap_b32 v{V+4*u+hh}, v{V+4*u+2+hh}")
        ng = o.get("at_g", 7); nd = o.get("at_d", 3)
        fill = []
        for g in range(ng): d = eng.D(nd); fill.append(d + eng.R(2))
        a.extend(weave(main, fill, start=20, end=len(main) - 40))
        a(f"s_add_u32 s{sT0}, s{sSTO}, {144*2048}")
        for u in range(4):
            a(f"buffer_store_dwordx4 {vr(V+4*u,4)}, v{vST}, {srd(rWS)}, s{sSTO if u < 2 else sT0} offen offset:{(u&1)*1024} sc1", tag="st")
        self.stamp(a, 4)
        a.extend(eng.R(8)); a.extend(eng.D(o.get("at_after", 6)))
        self.publish(a)
        self.stamp(a, 5)
        a.extend(eng.drain())
        a("s_waitcnt lgkmcnt(0)\ns_branch L_p2")

    def ffn(self):
        a = self.a; o = self.o
        a.label("L_ffn")
        a.restore("pro")
        ACC = 0
        xq, wb0, wbh, vSV, vB1 = 144, 152, 155, 158, 159
        nm, rs, sb, t, CC, BV = 160, 161, 162, 163, 164, 168
        fW = lambda b, j: 160 + 32 * b + 4 * j
        fX = lambda b: 160 + 32 * b + 28
        cT = 224
        self.mk_srd(a, rC, pB1, 3584)
        a(f"""
        v_and_b32 v30, 31, v{vLANE}
        v_bfe_u32 v7, v{vLANE}, 1, 3
        v_xor_b32 v7, v6, v7
        v_lshlrev_b32 v7, 4, v7
        v_lshl_add_u32 v7, v30, 7, v7
        v_add_u32 v{xq}, s{sWB}, v7
        v_xor_b32 v{xq+1}, 32, v{xq}
        v_xor_b32 v{xq+2}, 64, v{xq}
        v_xor_b32 v{xq+3}, 96, v{xq}
        """)
        for q in range(4): a(f"v_add_u32 v{xq+4+q}, {2*SL}, v{xq+q}")
        a(f"""
        v_bfe_u32 v7, v{vLANE}, 2, 2
        v_lshlrev_b32 v31, 3, v5
        v_lshl_add_u32 v31, v20, 5, v31
        v_lshl_add_u32 v31, v7, 6, v31
        v_lshl_add_u32 v{wb0}, v6, 10, v31
        v_lshl_add_u32 v{wbh}, v6, 9, v31
        v_add_u32 v{wb0+1}, {SL}, v{wb0}
        v_add_u32 v{wb0+2}, {2*SL}, v{wb0}
        v_add_u32 v{wbh+1}, {SL}, v{wbh}
        v_add_u32 v{wbh+2}, {2*SL}, v{wbh}
        v_lshlrev_b32 v{vSV}, 2, v30
        v_lshlrev_b32 v{vB1}, 1, v30
        s_lshl_b32 s{sT0}, s{sRB}, 1
        s_lshr_b32 s{sT1}, s{sW}, 1
        s_add_u32 s{sT0}, s{sT0}, s{sT1}
        s_lshl_b32 s{sFLG}, s{sT0}, 2
        s_lshr_b32 s{sT1}, s{sCG}, 1
        s_add_u32 s{sFLG}, s{sFLG}, s{sT1}
        s_lshl_b32 s{sFLG}, s{sFLG}, 4
        s_and_b32 s{sODD}, s{sCG}, 1
        s_add_u32 s{sFLG}, s{sFLG}, s{sODD}
        s_lshl_b32 s{sFLG}, s{sFLG}, 1
        s_and_b32 s{sT2}, s{sW}, 1
        s_add_u32 s{sFLG}, s{sFLG}, s{sT2}
        s_lshl_b32 s{sFLG}, s{sFLG}, 2
        s_add_u32 s{sFLG}, s{sFLG}, {WS_YFL}
        s_mul_i32 s{sT0}, s{sT0}, 144
        s_add_u32 s{sT0}, s{sT0}, 32
        s_lshl_b32 s{sT0}, s{sT0}, 1
        s_add_u32 s{sT0}, s{sT0}, s{sT2}
        s_lshl_b32 s{sT0}, s{sT0}, 10
        s_mul_i32 s{sQ+2}, s{sCG}, 7
        s_cmp_eq_u32 s{sODD}, 0
        s_cselect_b32 s{sT1}, 6, 0
        s_add_u32 s{sQ+3}, s{sQ+2}, s{sT1}
        s_add_u32 s{sQ+2}, s{sQ+2}, s{sODD}
        s_lshl_b32 s{sT1}, s{sQ+2}, 12
        s_add_u32 s{sSTO}, s{sT0}, s{sT1}
        s_lshl_b32 s{sT1}, s{sQ+3}, 12
        s_add_u32 s{sSTO6}, s{sT0}, s{sT1}
        """)
        for j in range(7):
            for r in range(1, 4): a(f"v_accvgpr_write_b32 a{cT+4*j+r}, 0")
        self.side_job(a, "ff")
        def reads(s, q):
            b = q & 1; sl = s % 3
            g = [G(f"ds_read_b128 {ar(fX(b),4)}, v{xq+4*(sl>>1)+q} offset:{(sl&1)*SL}")]
            for j in range(7):
                for e in range(2):
                    tag = "rd" if j == 6 else f"w{q}{j}"
                    if j < 6: g.append(G(f"ds_read_b64_tr_b16 {ar(fW(b,j)+2*e,2)}, v{wb0+sl} offset:{q*WR + 5120 + (j>>1)*2048 + (j&1)*512 + e*256}", tag=tag))
                    else: g.append(G(f"ds_read_b64_tr_b16 {ar(fW(b,j)+2*e,2)}, v{wbh+sl} offset:{q*WR + 4096 + e*256}", tag=tag))
            return g
        def mfmas(q, first=False):
            b = q & 1; g = []
            for j in range(7):
                aft = {0: [f"w{q}1"], 2: [f"w{q}3"], 4: [f"w{q}5"]}.get(j, [])
                g.append(G(f"v_mfma_f32_32x32x16_bf16 {vr(ACC+16*j,16)}, {ar(fW(b,j),4)}, {ar(fX(b),4)}, {'0' if first else vr(ACC+16*j,16)}", after=aft))
            return g
        h = self.hooks("ff"); sf = o.get("sf", 4)
        h[2].append(G(f"s_lshl_b32 s{sT0}, s{sQ+2}, 6\ns_lshl_b32 s{sT2}, s{sQ+3}, 6") +
                    [i for j in range(7) for i in G(f"buffer_load_ushort a{cT+4*j}, v{vB1}, {srd(rC)}, s{sT0 if j < 6 else sT2} offen offset:{64*j if j < 6 else 0}")])
        h[sf+1].append(G(f"""
            s_lshl_b32 s{sT0}, s{sRB}, 2
            s_add_u32 s{sT0}, s{sT0}, s{sW}
            s_lshl_b32 s{sT0}, s{sT0}, 7
            s_add_u32 s{sT0}, s{sT0}, {WS_ST}
            buffer_load_dword v{vSV}, v{vSV}, {srd(rWS)}, s{sT0} offen sc1"""))
        h[sf+1].append(G(f"s_lshl_b32 s{sT0}, s{sQ+2}, 9\ns_lshl_b32 s{sT2}, s{sQ+3}, 9\ns_add_u32 s{sT0}, s{sT0}, {WS_CS+1536*16}\ns_add_u32 s{sT2}, s{sT2}, {WS_CS+1536*16}"))
        for j0 in (0, 4):
            h[sf+1].append(G("s_mov_b32 exec_hi, 0") +
                           [i for j in range(j0, min(j0+4, 7)) for i in G(f"buffer_load_dwordx4 {ar(cT+4*j,4)}, v{vL16}, {srd(rWS)}, s{sT0 if j < 6 else sT2} offen offset:{512*j if j < 6 else 0} sc1")] +
                           G("s_mov_b32 exec_hi, -1"))
        h[7] += split([G(f"""
            v_and_b32 v{sb}, 0xffff0000, v{vSV}
            v_rcp_f32 v{rs}, v{sb}
            v_cmp_gt_u32 vcc, 32, v{vLANE}
            v_lshrrev_b32 v{BV}, 16, v{vSV}
            v_and_b32 v{t}, 0xffff, v{vSV}
            v_lshl_or_b32 v{t}, v{t}, 16, v{t}
            v_cndmask_b32 v{BV}, v{BV}, v{t}, vcc
            v_cndmask_b32 v{BV+1}, 0, v{t}, vcc
            v_mov_b32 v{BV+2}, v{BV+1}
            v_mov_b32 v{BV+3}, v{BV+1}
            v_mul_f32 v{CC+1}, {fb(GC0)}, v{rs}
            v_mul_f32 v{t}, v{rs}, v{rs}
            v_mul_f32 v{CC}, {fb(0.044715)}, v{CC+1}
            v_mul_f32 v{CC}, v{CC}, v{t}""")])
        eng = self.w2_engine()
        for s in range(8):
            self.stage_top(a, s)
            if s == 0: self.stamp(a, 2)
            dm = [] if o.get("nodma") else self.stage_dmas("ff", s + 2)
            n = len(dm); cut = [0, n * 3 // 10, n * 6 // 10, n * 8 // 10, n]
            if o.get("nocomp"):
                for g in dm + h[s]: a.extend(g)
                continue
            for q in range(4):
                d = dm[cut[q]:cut[q+1]]
                if s == 0 and q == 0:
                    for g in reads(0, 0) + d: a.extend(g)
                    continue
                m = mfmas((q + 3) & 3, s == 0 and q == 1)
                if q < 2: a.extend(pack(m, merge(reads(s, q), d or [[]])))
                elif q == 2: a.extend(pack(m, merge(reads(s, q), d + h[s] or [[]])))
                else:
                    a.extend(pack(m[:5], reads(s, q))); a.extend(pack(m[5:], d))
        self.stage_top(a, 8)
        self.stamp(a, 3)
        pre = mfmas(3) + [G(f"v_mfma_f32_32x32x16_bf16 {vr(ACC+16*j,16)}, {ar(cT+4*j,4)}, {vr(BV,4)}, {vr(ACC+16*j,16)}") for j in range(7)]
        npre = o.get("ff_pre", 8); nr = o.get("ff_r", 20)
        for j in range(14):
            a.extend(pre[j] + eng.R((nr * (j + 1)) // 14 - (nr * j) // 14) + eng.D((npre * (j + 1)) // 14 - (npre * j) // 14))
        dpat = [int(c) for c in str(o.get("ff_d", 22222222222110))]
        main = []
        def M(t, tag=None): main.append(G(t, tag))
        Z, O = 112, 128
        for j in range(7):
            for q2 in range(2):
                x0 = ACC + 16 * j + 8 * q2; z = Z + 8 * q2; oo = O + 4 * ((2 * j + q2) % 3)
                P = range(0, 8, 2)
                for p in P: M(f"v_pk_mul_f32 {vr(z+p,2)}, {vr(x0+p,2)}, {vr(x0+p,2)}")
                for p in P: M(f"v_pk_fma_f32 {vr(z+p,2)}, {vr(z+p,2)}, {vr(CC,2)}, {vr(CC,2)} op_sel:[0,0,1] op_sel_hi:[1,0,1]")
                for p in P: M(f"v_pk_mul_f32 {vr(z+p,2)}, {vr(z+p,2)}, {vr(x0+p,2)}")
                for p in range(8): M(f"v_exp_f32 v{z+p}, v{z+p}")
                for p in P: M(f"v_pk_fma_f32 {vr(z+p,2)}, {vr(z+p,2)}, {vr(sb,2)}, {vr(sb,2)} op_sel_hi:[1,0,0]")
                for p in range(8): M(f"v_rcp_f32 v{z+p}, v{z+p}")
                for p in P: M(f"v_pk_mul_f32 {vr(z+p,2)}, {vr(z+p,2)}, {vr(x0+p,2)}")
                for p in P: M(f"v_cvt_pk_bf16_f32 v{oo+p//2}, v{z+p}, v{z+p+1}")
                d = eng.D(dpat[2 * j + q2])
                k = next((n for n, i in enumerate(d) if i.vm), 0)
                main.append(d[:k]); d = d[k:]
                if j < 6 and q2 == 0: M(f"s_add_u32 s{sT2}, s{sSTO}, {4096*j}")
                M(f"buffer_store_dwordx4 {vr(oo,4)}, v{vL16}, {srd(rWS)}, s{sT2 if j < 6 else sSTO6} offen offset:{2048*q2} sc1", "st")
                main.append(d)
                if eng.r + 33 < eng.d + 4: main.append(eng.R(2))
        for g in main: a.extend(g)
        self.stamp(a, 4)
        a.extend(eng.R(8)); a.extend(eng.D(o.get("ff_after", 6)))
        self.publish(a)
        self.stamp(a, 5)
        a.extend(eng.drain())
        a("s_waitcnt lgkmcnt(0)")

    def poll(self, a, name, vF, sFL, mask):
        a(f"""
        s_mov_b32 s{sT1}, 0
        L_poll{name}:
        buffer_load_dword v{vF}, v{vF+1}, {srd(rWS)}, s{sFL} offen sc1
        s_add_u32 s{sT1}, s{sT1}, 1
        s_waitcnt vmcnt(0)
        v_cmp_eq_u32 vcc, 1, v{vF}
        s_cmp_ge_u32 s{sT1}, 0x100000
        s_cbranch_scc1 L_ready{name}
        s_andn2_b32 s{sT2}, {mask}, vcc_lo
        s_cbranch_scc1 L_poll{name}
        L_ready{name}:
        """)

    def phase2(self):
        a = self.a
        a.label("L_p2")
        a.assume(vm=[], lgkm=[])
        AS, AY, WT, XR, BR, XU, vA, vXO, vF, vR, PT = 0, 64, 128, 144, 152, 160, 176, 178, 180, 182, 192
        sAB, sFY, sXO, sFL = sQ, sQ + 1, sQ + 2, sQ + 3
        a(f"""
        s_lshr_b32 s{sT0}, s{sW}, 1
        s_lshl_b32 s{sT1}, s{sT0}, 10
        v_add_u32 v{vA}, s{sT1}, v{vL16}
        v_xor_b32 v{vA+1}, 0x400, v{vA}
        s_lshl_b32 s{sXO}, s{sMT}, 1
        s_add_u32 s{sXO}, s{sXO}, s{sT0}
        s_lshl_b32 s{sXO}, s{sXO}, 15
        s_lshl_b32 s{sT1}, s{sNT}, 1
        s_and_b32 s{sT0}, s{sW}, 1
        s_add_u32 s{sT1}, s{sT1}, s{sT0}
        s_lshl_b32 s{sT1}, s{sT1}, 6
        s_add_u32 s{sXO}, s{sXO}, s{sT1}
        v_and_b32 v{vF}, 15, v{vLANE}
        v_bfe_u32 v{vXO}, v{vLANE}, 4, 1
        v_lshl_add_u32 v{vXO}, v{vF}, 1, v{vXO}
        v_lshlrev_b32 v{vXO}, 10, v{vXO}
        v_lshrrev_b32 v{vR}, 5, v{vLANE}
        v_lshl_add_u32 v{vXO+1}, v{vR}, 4, v{vXO}
        v_lshlrev_b32 v{vR}, 3, v{vR}
        v_lshrrev_b32 v{XR}, 2, v{vLANE}
        v_lshlrev_b32 v{XR}, 11, v{XR}
        v_and_b32 v{XR+1}, 3, v{vLANE}
        v_lshl_add_u32 v{XR}, v{XR+1}, 4, v{XR}
        s_lshl_b32 s{sT0}, s{sW}, 11
        s_add_u32 s{sT0}, s{sT0}, {XT_X}
        s_mov_b32 m0, s{sT0}
        v_and_b32 v{XR+1}, 31, v{vLANE}
        v_lshl_add_u32 v{XR+1}, v{XR+1}, 6, v{vR}
        v_add_u32 v{vXO}, s{sT0}, v{XR+1}
        v_and_b32 v{vF+1}, 7, v{vLANE}
        v_lshlrev_b32 v{vF+1}, 2, v{vF+1}
        s_lshr_b32 s{sFL}, s{sMT}, 1
        s_lshl_b32 s{sFL}, s{sFL}, 2
        """)
        for i in range(4): a(f"buffer_load_dwordx2 {vr(BR+2*i,2)}, v{vR}, {srd(rB2)}, s{sT1} offen offset:{16*i}")
        a(f"""
        buffer_load_dwordx4 v{XR}, {srd(rX2)}, s{sXO} offen lds
        buffer_load_dwordx4 v{XR}, {srd(rX2)}, s{sXO} offen offset:1024 lds
        s_add_u32 s{sFL}, s{sFL}, s{sW}
        s_lshl_b32 s{sFL}, s{sFL}, 7
        s_add_u32 s{sFL}, s{sFL}, {WS_SFL}
        s_lshl_b32 s{sFY}, s{sMT}, 2
        s_add_u32 s{sFY}, s{sFY}, s{sW}
        s_lshl_b32 s{sFY}, s{sFY}, 7
        s_add_u32 s{sFY}, s{sFY}, {WS_YFL}
        s_mul_i32 s{sAB}, s{sMT}, {144*2048}
        s_lshl_b32 s{sT0}, s{sW}, 14
        s_add_u32 s{sT0}, s{sT0}, s{sAB}
        s_mul_i32 s{sT1}, s{sW}, {28*2048}
        s_add_u32 s{sAB}, s{sAB}, s{sT1}
        s_add_u32 s{sAB}, s{sAB}, {32*2048}
        """)
        self.poll(a, "s", vF, sFL, "0xff")
        self.stamp(a, 6)
        order = [('s', k) for k in range(8)] + [('y', k) for k in range(20, 28)] + [('y', k) for k in range(20)]
        LA = self.o.get("la", 12); TL = self.o.get("tl", 6)
        units = [(n, b) for n in range(36 - TL) for b in range(2)] + [(n, b) for b in (1, 0) for n in range(36 - TL, 36)]
        stg = lambda u: 160 + 4 * (u % 24)
        last = [None]
        def load(u):
            n, b = units[u]; kind, k = order[n]; g = []
            if last[0] != (kind, k >> 1):
                g += G(f"s_add_u32 s{sT3}, s{sT0 if kind=='s' else sAB}, {(k>>1)*4096}"); last[0] = (kind, k >> 1)
            return g + G(f"buffer_load_dwordx4 {ar(stg(u),4)}, v{vA+b}, {srd(rWS)}, s{sT3} offen offset:{(k&1)*2048} sc1")
        def chunk0(n):
            kind, k = order[n]
            return 44 + 2 * k if kind == 's' else (2 * k if k < 22 else 2 * k + 16)
        def wreads(n):
            return [G(self.tr_read(vr(WT + 8 * (n & 1) + 4 * h + 2 * e, 2), chunk0(n) + e, h), tag=f"w{n}") for h in range(2) for e in range(2)]
        def lds_at(base, c):
            off = self.chunk_lds(c)
            return (base + 1, off - 2 * SL) if off >= 2 * SL else (base, off)
        def part_write(acc, c0, after):
            g = []
            for j in range(1, 4):
                for i in range(4):
                    r, off = lds_at(vR, c0 + 4 * (j - 1) + i)
                    g.append(G(f"ds_write_b128 v{r}, {vr(acc+16*j+4*i,4)} offset:{off}", after=after))
            return g
        def part_read(dst, c0, j):
            g = []
            for i in range(4):
                r, off = lds_at(vR + 2 * j, c0 + 4 * (j - 1) + i)
                g.append(G(f"ds_read_b128 {vr(dst+4*i,4)}, v{r} offset:{off}"))
            return g
        def unit(u, lim):
            n, b = units[u]; kind, k = order[n]
            acc = AS if kind == 's' else AY
            m = []
            for h in (1, 0):
                d = vr(acc + 16 * (h + 2 * b), 16)
                wf = vr(WT + 8 * (n & 1) + 4 * h, 4) if n < 16 else ar(8 * k + 4 * h, 4)
                c = "0" if (n == 0 or (n == 8 and h + b > 0)) else d
                m.append(G(f"v_mfma_f32_32x32x16_bf16 {d}, {wf}, {ar(stg(u),4)}, {c}", after=[f"w{n}"]))
            if n + 1 < 16 and b == 0:
                w = wreads(n + 1)
                m[0] += w[0] + w[1]; m[1] += w[2] + w[3]
            if u + LA < lim: m[0] += load(u + LA)
            return m
        for u in range(min(LA, 16)): a.extend(load(u))
        for g in wreads(0): a.extend(g)
        for i in range(4): a(f"ds_read_b64 {vr(XR+2*i,2)}, v{vXO} offset:{16*i}")
        for i in range(8): a(f"v_lshlrev_b32 v{AY+2*i}, 16, v{BR+i}\nv_and_b32 v{AY+2*i+1}, 0xffff0000, v{BR+i}")
        a(f"v_add_u32 v{vR}, s{sWB}, v{vL16}\nv_add_u32 v{vR+1}, {2*SL}, v{vR}")
        for j in range(1, 4):
            a(f"s_xor_b32 s{sT1}, s{sW}, {j}\ns_mul_i32 s{sT1}, s{sT1}, {WR}\nv_add_u32 v{vR+2*j}, s{sT1}, v{vL16}\nv_add_u32 v{vR+2*j+1}, {2*SL}, v{vR+2*j}")
        for i in range(8): a(f"v_lshlrev_b32 v{XU+2*i}, 16, v{XR+i}\nv_and_b32 v{XU+2*i+1}, 0xffff0000, v{XR+i}")
        for u in range(16):
            for x in unit(u, 16): a.extend(x)
        self.stamp(a, 7)
        self.poll(a, "y", vF, sFY, "15")
        self.stamp(a, 8)
        for u in range(16, 16 + LA): a.extend(load(u))
        for g in part_write(AS, 44, ["w7"]): a.extend(g)
        sred = sum([part_read(AS + 16 * j, 44, j) for j in range(1, 4)], [])
        sadd = [G(f"v_add_f32 v{AS+p}, v{AS+p}, v{AS+16*j+p}") for j in range(1, 4) for p in range(16)]
        ywr = part_write(AY, 60, [])
        late = ywr[8:] + ywr[4:8]
        for u in range(16, 72):
            m = unit(u, 72)
            if u == 32: m[1] += G("s_waitcnt lgkmcnt(0)\ns_barrier")
            if 33 <= u < 39: m[0] += sred[2 * (u - 33)]; m[1] += sred[2 * (u - 33) + 1]
            if 42 <= u < 54:
                for i in range(4): m[i // 2] += sadd[4 * (u - 42) + i]
            if TL >= 5 and 73 - TL <= u < 77 - TL: m[0] += late[2 * (u - 73 + TL)]; m[1] += late[2 * (u - 73 + TL) + 1]
            for x in m: a.extend(x)
        self.stamp(a, 9)
        for g in (ywr[:4] if TL >= 5 else ywr): a.extend(g)
        a(f"v_mov_b32 v{vF}, {fb(-LOG2E)}")
        a("s_waitcnt lgkmcnt(0)\ns_barrier")
        for i in range(4):
            for j in range(1, 4): a.extend(part_read(AY + 16 * j, 60, j)[i])
        for hf in range(2):
            PH = range(8 * hf, 8 * hf + 8, 2)
            for j in range(1, 4):
                for p in PH: a(f"v_pk_add_f32 {vr(AY+p,2)}, {vr(AY+p,2)}, {vr(AY+16*j+p,2)}")
            for p in PH: a(f"v_pk_mul_f32 {vr(PT+p,2)}, {vr(AY+p,2)}, {vr(vF,2)} op_sel_hi:[1,0]")
            for p in range(8 * hf, 8 * hf + 8): a(f"v_exp_f32 v{PT+p}, v{PT+p}")
            for p in PH: a(f"v_pk_mul_f32 {vr(AS+p,2)}, {vr(AS+p,2)}, {vr(AY+p,2)}")
            for p in PH: a(f"v_pk_add_f32 {vr(PT+p,2)}, {vr(PT+p,2)}, 1.0 op_sel_hi:[1,0]")
            for p in range(8 * hf, 8 * hf + 8): a(f"v_rcp_f32 v{PT+p}, v{PT+p}")
            for p in PH: a(f"v_pk_fma_f32 {vr(PT+p,2)}, {vr(PT+p,2)}, {vr(AS+p,2)}, {vr(XU+p,2)}")
            for p in PH: a(f"v_cvt_pk_bf16_f32 v{XR+p//2}, v{PT+p}, v{PT+p+1}")
            a(f"v_permlane32_swap_b32 v{XR+4*hf}, v{XR+4*hf+2}\nv_permlane32_swap_b32 v{XR+4*hf+1}, v{XR+4*hf+3}")
            a(f"buffer_store_dwordx4 {vr(XR+4*hf,4)}, v{vXO+1}, {srd(rOUT)}, s{sXO} offen offset:{32*hf}" + ("", " sc1", " nt", " sc0 sc1")[self.o.get("outf", 0)])
        if self.stamps:
            self.stamp(a, 10)
            a("s_waitcnt vmcnt(0)")
            self.stamp(a, 11)
            a(f"""
            s_lshl_b32 s{sT0}, s{sSID}, 7
            s_add_u32 s{sT0}, s{sT0}, {WS_STAMPS}
            v_lshlrev_b32 v{vF+1}, 2, v{vLANE}
            s_mov_b32 exec_hi, 0
            buffer_store_dword v{vSTAMP}, v{vF+1}, {srd(rWS)}, s{sT0} offen
            """)
        if "dk1" in self.o:
            a(f"""
            s_cmp_lg_u32 s2, {self.o.get("dwg", 0)}
            s_cbranch_scc1 L_end
            v_readlane_b32 s{sT0}, v{vSTAMP}, {self.o.get("dk0", 0)}
            v_readlane_b32 s{sT1}, v{vSTAMP}, {self.o["dk1"]}
            v_readlane_b32 s{sT2}, v{vSTAMP}, 11
            s_nop 3
            s_sub_u32 s{sT0}, s{sT1}, s{sT0}
            s_min_u32 s{sT0}, s{sT0}, 10000
            s_mul_i32 s{sT0}, s{sT0}, 10
            L_diag:
            s_memrealtime s[{sCLK}:{sCLK+1}]
            s_waitcnt lgkmcnt(0)
            s_sub_u32 s{sT1}, s{sCLK}, s{sT2}
            s_cmp_lt_u32 s{sT1}, s{sT0}
            s_cbranch_scc1 L_diag
            """)
        a("L_end:\ns_endpgm")
        a.assume(vm=[], lgkm=[])
        a.extend(self.tail)

    def build(self):
        self.prologue(); self.attention(); self.ffn(); self.phase2()
        body = self.a.finalize().replace("CODE_LINES", "0xc8")
        if self.o.get("align", 1): body = align8(body)
        total = sum(sizes([l for l in body.split("\n") if l.strip() and not l.startswith(";")]))
        body = body.replace("v_min_u32 v2, 0xc8, v2", f"v_min_u32 v2, {hex((total - 64) // 128)}, v2")
        self.total = total
        head = open("cdna_kernels/" + NAME[:-7] + ".s.ref").read().split("; Override launch")[0]
        return (head + "; @launch grid=(256,1,1) block=(256,1,1) lds=163840\n"
                f'.amdgcn_target "amdgcn-amd-amdhsa--gfx950"\n.text\n.globl {NAME}\n.p2align 8\n.type {NAME},@function\n{NAME}:\n'
                + body +
                f'''.section .rodata,"a"
.p2align 6
.amdhsa_kernel {NAME}
  .amdhsa_next_free_vgpr 512
  .amdhsa_next_free_sgpr 102
  .amdhsa_accum_offset 256
  .amdhsa_group_segment_fixed_size 0
  .amdhsa_kernarg_size 88
  .amdhsa_user_sgpr_count 2
  .amdhsa_user_sgpr_kernarg_segment_ptr 1
  .amdhsa_system_sgpr_workgroup_id_x 1
.end_amdhsa_kernel
''')

if __name__ == "__main__":
    import argparse
    p = argparse.ArgumentParser()
    p.add_argument("out"); p.add_argument("--stamps", action="store_true")
    p.add_argument("-o", action="append", default=[])
    x = p.parse_args()
    opts = {k: int(v, 0) for k, v in (s.split("=") for s in x.o)}
    g = Gen(x.stamps, opts)
    open(x.out, "w").write(g.build())
    print(x.out, "code bytes", g.total)
```
